```python
import torch

def _softmax(x, axis=-1):
    return torch.softmax(x, dim=axis)

def _gelu(x):
    return torch.nn.functional.gelu(x, approximate='tanh')

def _silu(x):
    return torch.nn.functional.silu(x)

def _sigmoid(x):
    return torch.sigmoid(x)

def _layernorm(x, axis=-1, eps=1e-05):
    m = x.mean(dim=axis, keepdim=True)
    v = x.var(dim=axis, keepdim=True, unbiased=False)
    return (x - m) / torch.sqrt(v + eps)

def _scatter_add(tgt, idx, src, axis=0):
    return tgt.clone().index_add_(axis, idx, src)

def _segment_sum(src, seg, n):
    out = torch.zeros((n,) + src.shape[1:], dtype=src.dtype)
    return out.index_add_(0, seg, src)

def _pad(x, pw):
    flat = tuple((v for pair in reversed(pw) for v in pair))
    return torch.nn.functional.pad(x, flat)
kernel_name = 'gated_mix__memory_aug_recurrent_mem_tr__glu_gated_glu__prompt'

def setup_inputs():

    _w = lambda a: (lambda t: t.to(torch.bfloat16) if t.is_floating_point() else t)(torch.as_tensor(a))

    def _A_setup():
        B, S, Dm = (1, 2048, 640)
        H, Dh = (32, 192)
        M, seg = (8, 32)
        seg = min(seg, S)
        S = S // seg * seg
        return {'x': _w((lambda *s: torch.randn(*s, dtype=torch.bfloat16) * 0.05)(B, S, Dm)), 'mem0': _w((lambda *s: torch.randn(*s, dtype=torch.bfloat16) * 0.8)(B, M, Dm)), 'Wq': _w((lambda *s: torch.randn(*s, dtype=torch.bfloat16) * 1.6)(Dm, H, Dh) * Dm ** (-0.5)), 'Wk': _w((lambda *s: torch.randn(*s, dtype=torch.bfloat16) * 1.6)(Dm, H, Dh) * Dm ** (-0.5)), 'Wv': _w((lambda *s: torch.randn(*s, dtype=torch.bfloat16) * 0.8)(Dm, H, Dh) * Dm ** (-0.5)), 'Wo': _w((lambda *s: torch.randn(*s, dtype=torch.bfloat16) * 0.8)(H, Dh, Dm) * (H * Dh) ** (-0.5)), 'seg_len': seg}
    _A_in = _A_setup()

    def _B_setup():
        B, S, D, F = (1, 2048, 640, 1536)
        return {'x': _w((lambda *s: torch.randn(*s, dtype=torch.bfloat16) * 0.05)(B, S, D)), 'w_gate': _w((lambda *s: torch.randn(*s, dtype=torch.bfloat16) * 0.4)(D, F)), 'w_up': _w((lambda *s: torch.randn(*s, dtype=torch.bfloat16) * 0.05)(D, F)), 'w_down': _w((lambda *s: torch.randn(*s, dtype=torch.bfloat16) * 0.05)(F, D))}
    _B_in = _B_setup()
    return {'A_x': _A_in['x'], 'A_mem0': _A_in['mem0'], 'A_Wq': _A_in['Wq'], 'A_Wk': _A_in['Wk'], 'A_Wv': _A_in['Wv'], 'A_Wo': _A_in['Wo'], 'A_seg_len': _A_in['seg_len'], 'B_x': _B_in['x'], 'B_w_gate': _B_in['w_gate'], 'B_w_up': _B_in['w_up'], 'B_w_down': _B_in['w_down'], 'gate_w': _w((lambda *s: torch.randn(*s, dtype=torch.bfloat16) * 0.05)(640) * 16.0)}

def reference(A_x, A_mem0, A_Wq, A_Wk, A_Wv, A_Wo, A_seg_len, B_x, B_w_gate, B_w_up, B_w_down, gate_w):

    def _A_ref(x, mem0, Wq, Wk, Wv, Wo, seg_len):
        B, S, Dm = x.shape
        H, Dh = (Wq.shape[1], Wq.shape[2])
        M = mem0.shape[1]
        scale = Dh ** (-0.5)
        n_seg = S // seg_len
        L = M + seg_len
        idx = torch.arange(L)
        mask = (idx[:, None] < M) | (idx[:, None] >= idx[None, :])
        mem = mem0
        outs = []
        for s in range(n_seg):
            xs = x[:, s * seg_len:(s + 1) * seg_len, :].clone()
            h = torch.concatenate([mem, xs], axis=1)
            q = torch.einsum('btd,dhe->bhte', h, Wq)
            k = torch.einsum('btd,dhe->bhte', h, Wk)
            v = torch.einsum('btd,dhe->bhte', h, Wv)
            scores = torch.einsum('bhqe,bhke->bhqk', q, k) * scale
            scores = torch.where(mask[None, None], scores, -1000000000.0)
            p = _softmax(scores, axis=-1)
            o = torch.einsum('bhqk,bhke->bhqe', p, v)
            o = torch.einsum('bhte,hed->btd', o, Wo)
            mem = o[:, :M, :].clone()
            outs.append(o[:, M:, :])
        return torch.concatenate(outs, axis=1)

    def _B_ref(x, w_gate, w_up, w_down):
        g = torch.einsum('bsd,df->bsf', x, w_gate)
        u = torch.einsum('bsd,df->bsf', x, w_up)
        h = _sigmoid(g) * u
        return torch.einsum('bsf,fd->bsd', h, w_down)
    x = A_x
    g = _sigmoid((x * gate_w).sum(-1, keepdims=True))
    a = _A_ref(x, A_mem0, A_Wq, A_Wk, A_Wv, A_Wo, A_seg_len)
    b = _B_ref(x, B_w_gate, B_w_up, B_w_down)
    return g * a + (1 - g) * b
```

```python
import re

REG_RE = re.compile(r"^([vas])(?:(\d+)|\[(\d+):(\d+)\])$")


def regs(op):
    op = op.strip()
    if op.startswith("-") or op.startswith("|"):
        op = op.strip("-|")
    if op == "vcc":
        return [("s", "vcc")]
    if op == "exec":
        return [("s", "exec")]
    if op == "m0":
        return [("s", "m0")]
    m = REG_RE.match(op)
    if not m:
        return []
    k = m.group(1)
    if m.group(2) is not None:
        return [(k, int(m.group(2)))]
    return [(k, i) for i in range(int(m.group(3)), int(m.group(4)) + 1)]


TRANS = ("v_exp_f32", "v_log_f32", "v_rcp_f32", "v_rsq_f32", "v_sqrt_f32", "v_sin_f32", "v_cos_f32")


class Ins:
    __slots__ = ("text", "kind", "mn", "wr", "rd", "srcA", "srcB", "srcC", "dpp", "ws", "target", "wide", "lds", "sdata")

    def __init__(self, text):
        self.text = text
        self.wr = []; self.rd = []; self.srcA = []; self.srcB = []; self.srcC = []
        self.dpp = False; self.ws = 1; self.target = None; self.wide = False; self.lds = False; self.sdata = []
        t = text.split(";")[0].strip()
        if not t:
            self.kind = "comment"; self.mn = ""; self.ws = 0; return
        if t.endswith(":"):
            self.kind = "label"; self.mn = t[:-1]; self.ws = 0; return
        parts = t.split(None, 1)
        mn = parts[0]; self.mn = mn
        rest = parts[1] if len(parts) > 1 else ""
        if mn.startswith("s_getreg") or mn.startswith("s_setreg"):
            self.kind = "salu"; self.wr = regs(rest.split(",")[0]); return
        mm = re.search(r"\s(op_sel|neg_lo|neg_hi|row_|quad_perm|wave_|offset|offen|lds|sc0|sc1|nt|clamp|bank_mask|bound_ctrl|cbsz|blgp|abid)", " " + rest)
        mods = ""
        if mm:
            mods = (" " + rest)[mm.start():].strip(); rest = (" " + rest)[:mm.start()].strip()
        ops = [o.strip() for o in rest.split(",")] if rest else []
        if mn == "s_nop":
            self.kind = "nop"; self.ws = int(ops[0], 0) + 1; return
        if mn in ("s_branch",) or mn.startswith("s_cbranch"):
            self.kind = "branch"; self.target = ops[0]; return
        if mn in ("s_endpgm",):
            self.kind = "end"; return
        if mn in ("s_waitcnt", "s_barrier", "s_sleep", "s_setprio"):
            self.kind = "misc"; return
        if mn.startswith("v_mfma") or mn.startswith("v_smfmac"):
            self.kind = "mfma"
            self.wr = regs(ops[0]); self.srcA = regs(ops[1]); self.srcB = regs(ops[2])
            self.srcC = regs(ops[3]) if not mn.startswith("v_smfmac") else regs(ops[0])
            if mn.startswith("v_smfmac"):
                self.srcB = self.srcB + regs(ops[3])
            self.rd = self.srcA + self.srcB + self.srcC
            return
        if mn.startswith("v_"):
            self.kind = "valu"
            self.dpp = ("_dpp" in mn) or any(k in mods for k in ("row_", "quad_perm", "wave_"))
            if mn.startswith("v_cmp"):
                self.wr = regs(ops[0]); self.rd = sum((regs(o) for o in ops[1:]), [])
            elif mn.startswith("v_permlane") and "swap" in mn:
                self.wr = regs(ops[0]) + regs(ops[1]); self.rd = list(self.wr)
            elif "_co_" in mn:
                self.wr = regs(ops[0]) + regs(ops[1]); self.rd = sum((regs(o) for o in ops[2:]), [])
            else:
                self.wr = regs(ops[0]); self.rd = sum((regs(o) for o in ops[1:]), [])
                if self.dpp or mn.startswith("v_fmac") or mn.startswith("v_mac") or mn.startswith("v_writelane"):
                    self.rd = self.rd + regs(ops[0])
            return
        if mn.startswith("buffer_") or mn.startswith("global_"):
            self.kind = "vmem"
            self.lds = bool(re.search(r"\blds\b", mods))
            if mn.startswith("buffer_load"):
                if self.lds:
                    self.rd = sum((regs(o) for o in ops), []) + [("s", "m0")]
                else:
                    self.wr = regs(ops[0]); self.rd = sum((regs(o) for o in ops[1:]), [])
            elif mn.startswith("buffer_store"):
                self.sdata = regs(ops[0]); self.rd = sum((regs(o) for o in ops), [])
                self.wide = len(self.sdata) >= 3
            elif mn.startswith("buffer_atomic"):
                self.rd = sum((regs(o) for o in ops), [])
                if "sc0" in mods:
                    self.wr = regs(ops[0])
            else:
                raise ValueError("unhandled vmem " + t)
            return
        if mn.startswith("ds_"):
            self.kind = "ds"
            if mn.startswith("ds_read") or mn.startswith("ds_bpermute") or mn.startswith("ds_swizzle"):
                self.wr = regs(ops[0]); self.rd = sum((regs(o) for o in ops[1:]), [])
            else:
                self.rd = sum((regs(o) for o in ops), [])
            return
        if mn.startswith("s_load") or mn.startswith("s_memtime") or mn.startswith("s_memrealtime"):
            self.kind = "smem"; self.wr = regs(ops[0]); self.rd = sum((regs(o) for o in ops[1:]), []); return
        if mn.startswith("s_"):
            self.kind = "salu"
            if mn.startswith("s_cmp") or mn.startswith("s_bitcmp"):
                self.rd = sum((regs(o) for o in ops), [])
            else:
                self.wr = regs(ops[0]); self.rd = sum((regs(o) for o in ops[1:]), [])
                if "saveexec" in mn:
                    self.wr = self.wr + [("s", "exec")]
            return
        raise ValueError("cannot parse: " + t)


def _base(mn):
    return re.sub(r"_(e32|e64|dpp|sdwa)$", "", mn)


def _ov(a, b):
    return bool(set(a) & set(b))


def _vg(l):
    return [r for r in l if r[0] in "va"]


def _sg(l):
    return [r for r in l if r[0] == "s"]


def required(p, c):
    n = 0
    if p.kind == "valu":
        pv = _vg(p.wr); ps = _sg(p.wr)
        if pv:
            if c.kind == "mfma" and _ov(pv, c.rd): n = max(n, 2)
            if c.kind == "valu":
                if c.dpp and _ov(pv, c.rd): n = max(n, 2)
                if c.mn.startswith("v_permlane") and _ov(pv, c.rd): n = max(n, 2)
                if c.mn.startswith("v_readlane") or c.mn.startswith("v_readfirstlane"):
                    if _ov(pv, c.rd): n = max(n, 1)
                if _base(p.mn) in TRANS and _ov(pv, c.rd): n = max(n, 1)
        if ps:
            if c.kind == "valu" and _ov(ps, c.rd): n = max(n, 4 if c.mn.startswith("v_readlane") or c.mn.startswith("v_writelane") else 2)
            if c.kind == "vmem" and _ov(ps, c.rd): n = max(n, 5)
        if pv and _base(p.mn) in TRANS and c.kind in ("vmem", "ds", "mfma") and _ov(pv, c.rd): n = max(n, 1 if c.kind != "mfma" else 2)
    elif p.kind == "mfma":
        if c.kind == "mfma":
            if _ov(p.wr, c.srcA) or _ov(p.wr, c.srcB): n = max(n, 8)
            if _ov(p.wr, c.srcC) and (p.wr != c.srcC or p.mn != c.mn): n = max(n, 6)
            if _ov(p.wr, c.wr) and not _ov(p.wr, c.srcC): n = max(n, 6)
        elif c.kind == "valu":
            if _ov(p.wr, c.rd) or _ov(p.wr, c.wr): n = max(n, 8)
            if _ov(p.srcC, c.wr): n = max(n, 3)
        elif c.kind in ("vmem", "ds"):
            if _ov(p.wr, c.rd) or _ov(p.wr, c.wr): n = max(n, 8)
    elif p.kind == "vmem":
        if p.wide:
            if c.kind == "valu" and _ov(p.sdata, c.wr): n = max(n, 2)
            elif c.kind in ("vmem", "ds", "mfma") and _ov(p.sdata, c.wr): n = max(n, 1)
    elif p.kind == "salu":
        if ("s", "m0") in p.wr and c.kind == "vmem" and c.lds: n = max(n, 1)
    return n


WINDOW = 10


class Builder:
    def __init__(self):
        self.ins = []
        self.nlab = 0

    def __call__(self, s):
        for x in s.strip("\n").split("\n"):
            x = x.strip()
            if x:
                self.ins.append(Ins(x))

    def lab(self, base):
        self.nlab += 1
        return "%s_%d" % (base, self.nlab)

    def label(self, name):
        self.ins.append(Ins(name + ":"))

    def _check_seq(self, hist, start):
        hist = list(hist)
        i = start
        elapsed = 0
        while i < len(self.ins) and elapsed < WINDOW:
            c = self.ins[i]
            if c.ws == 0:
                i += 1; continue
            dist = 0
            for p in reversed(hist):
                if dist >= WINDOW: break
                r = required(p, c)
                if r > dist:
                    return i, r - dist
                dist += p.ws
            if c.kind == "end" or c.mn == "s_branch":
                return None
            hist.append(c); elapsed += c.ws
            i += 1
        return None

    def finalize(self):
        out = []
        for c in self.ins:
            if c.ws > 0:
                need = 0; dist = 0
                for p in reversed(out):
                    if p.ws == 0: continue
                    if p.kind == "end" or p.mn == "s_branch" or dist >= WINDOW: break
                    r = required(p, c)
                    if r > dist: need = max(need, r - dist)
                    dist += p.ws
                if need:
                    out.append(Ins("s_nop %d" % (need - 1)))
            out.append(c)
        self.ins = out
        changed = True
        while changed:
            changed = False
            labels = {c.mn: i for i, c in enumerate(self.ins) if c.kind == "label"}
            for b, c in enumerate(self.ins):
                if c.kind != "branch": continue
                if c.target not in labels: raise ValueError("unknown label " + c.target)
                hist = []; dist = 0; k = b
                while k >= 0 and dist < WINDOW:
                    p = self.ins[k]
                    if p.ws > 0:
                        if k != b and (p.kind == "end" or p.mn == "s_branch"): break
                        hist.insert(0, p); dist += p.ws
                    k -= 1
                v = self._check_seq(hist, labels[c.target] + 1)
                if v:
                    self.ins.insert(labels[c.target] + 1, Ins("s_nop %d" % (v[1] - 1)))
                    changed = True
                    break
        return "\n".join((c.text if c.kind == "label" else "    " + c.text) for c in self.ins) + "\n"


def vr(a, n=1): return "v%d" % a if n == 1 else "v[%d:%d]" % (a, a + n - 1)
def ar(a, n=1): return "a%d" % a if n == 1 else "a[%d:%d]" % (a, a + n - 1)
def sr(a, n=1): return "s%d" % a if n == 1 else "s[%d:%d]" % (a, a + n - 1)
```

```python
NAME = "gated_mix__memory_aug_recurrent_mem_tr__glu_gated_glu__prompt"
class Asm:
    def __init__(self): self.l = []; self.n = 0
    def __call__(self, s):
        for x in s.strip("\n").split("\n"): self.l.append(x.strip() if not x.strip().endswith(":") else x.strip())
    def lab(self, base):
        self.n += 1; return "%s_%d" % (base, self.n)
    def text(self): return "\n".join(self.l) + "\n"
def header(launch_lines):
    h = open("cdna_kernels/%s.s.ref" % NAME).read().split("\n")
    out = []
    for x in h:
        if x.startswith("; @launch"): break
        out.append(x)
    return "\n".join(out) + "\n" + "\n".join(launch_lines) + "\n.amdgcn_target \"amdgcn-amd-amdhsa--gfx950\"\n.text\n"
def kernel_open(name):
    return ".globl %s\n.p2align 8\n.type %s,@function\n%s:\n" % (name, name, name)
def descriptor(name, vgpr, sgpr=102, accum=None, agpr=0):
    acc = accum if accum is not None else ((vgpr + 3) // 4) * 4
    tot = acc + agpr if agpr else vgpr
    return (".amdhsa_kernel %s\n  .amdhsa_next_free_vgpr %d\n  .amdhsa_next_free_sgpr %d\n  .amdhsa_accum_offset %d\n"
            "  .amdhsa_group_segment_fixed_size 0\n  .amdhsa_kernarg_size 120\n  .amdhsa_user_sgpr_count 2\n"
            "  .amdhsa_user_sgpr_kernarg_segment_ptr 1\n  .amdhsa_system_sgpr_workgroup_id_x 1\n.end_amdhsa_kernel\n") % (name, tot, sgpr, acc)
RODATA = ".section .rodata,\"a\"\n.p2align 6\n"
```

```python
from ab import vr, ar, sr
import gen as GG
from gen import (WS, XS, SRD, sX, sJ, sW, sSEG, sT0, sT1, sT2, sT3, DBG, f2h, LOG2E,
                 P_X, P_MEM0, P_WQ, P_WK, P_WV, P_WO, P_WG, P_WU, P_WD, P_GW, P_OUT)

NEG_INF = "0xff800000"


def skip_role(g, r):
    if r not in g.roles:
        g.wait_all(g.sfx == "F"); g.b("s_branch EXIT")
        return True
    return False


def sigmoid(b, dst, src, tmp=None):
    b("v_mul_f32 %s, %s, %s" % (dst, f2h(-LOG2E), src))
    b("v_exp_f32 %s, %s" % (dst, dst))
    b("v_add_f32 %s, 1.0, %s" % (dst, dst))
    b("v_rcp_f32 %s, %s" % (dst, dst))


def role_f(g):
    b = g.b; s = g.sfx
    b.label("ROLE_F%s" % s)
    if skip_role(g, "F"): return
    g.srd(0, P_WG, 1966080); g.srd(1, P_WU, 1966080); g.srd(2, P_GW, 1280)
    b("s_sub_u32 s73, %s, 24" % sJ)
    b("s_mul_i32 s74, %s, 3\ns_add_u32 s74, s74, s73" % sX)
    base = lambda d: b("s_lshl_b32 %s, s74, 7" % d)
    panels = [dict(srd=SRD[p], base=base, pitch=3072, nrows=640, perm=False,
                   dst=(lambda ks, p=p: ("a", (p * 20 + ks) * 4))) for p in range(2)]
    g.stamp(0)
    b("v_lshrrev_b32 v2, 4, v0\nv_lshlrev_b32 v2, 4, v2")
    for ks in range(20):
        b("buffer_load_dwordx4 %s, v2, %s, 0 offen offset:%d" % (ar(160 + ks * 4, 4), SRD[2], ks * 64))
    g.token_prologue(panels, s == "F")
    g.stamp(1)
    g.xdma_setup("v10")
    b("v_lshlrev_b32 v11, 4, v0")
    b("s_lshr_b32 %s, %s, 1\ns_lshl_b32 %s, %s, 10" % (sT0, sW, sT0, sT0))
    b("s_and_b32 %s, %s, 1\ns_lshl_b32 %s, %s, 3\ns_add_u32 %s, %s, %s" % (sT1, sW, sT1, sT1, sT0, sT0, sT1))
    b("v_add_u32 v12, %s, v11" % sT0)
    b("s_lshl_b32 %s, %s, 7\ns_lshl_b32 %s, s73, 4\ns_add_u32 %s, %s, %s" % (sT0, sX, sT1, sT0, sT0, sT1))
    b("s_lshl_b32 %s, %s, 2\ns_add_u32 %s, %s, %s" % (sT1, sW, sT0, sT0, sT1))
    b("s_add_u32 %s, %s, %d\nv_mov_b32 v13, %s" % (sT0, sT0, GG.FO_OFF + 64, sT0))
    b("s_mul_i32 s75, %s, %d\ns_add_u32 s75, s75, %d" % (sX, 64 * 12288, GG.HXF_OFF))
    b("s_lshl_b32 %s, s73, 11\ns_add_u32 s75, s75, %s" % (sT0, sT0))
    b("s_lshl_b32 s79, %s, 13\ns_add_u32 s79, s79, %d" % (sX, GG.GX_OFF))
    b("s_add_u32 s80, s73, %s" % sW)
    b("v_and_b32 v9, 15, v0\nv_lshlrev_b32 v9, 2, v9")
    b("s_mov_b32 %s, 0\ns_mov_b32 s76, 0" % sSEG)
    g.xdma_issue("v10", sSEG, "s76")
    b("s_waitcnt vmcnt(0)")
    L = b.lab("floop")
    b.label(L)
    b("s_barrier")
    g.stamp(2, 10); g.stamp(8, 11)
    b("v_add_u32 v14, s76, v11")
    b("s_xor_b32 s76, s76, 40960\ns_add_u32 s77, %s, 1" % sSEG)
    side = g.xdma_side("v10", "s77", "s76")
    acc = lambda p, tt: 40 + (p * 2 + tt) * 4
    g.xloop("v14", 3, lambda p, ks: ar((p * 20 + ks) * 4, 4), acc, side=side)
    g.stamp(4, 10)
    for tt in range(2):
        G_, U_ = acc(0, tt), acc(1, tt)
        for i in range(4):
            b("v_mul_f32 v%d, %s, v%d" % (G_ + i, f2h(-LOG2E), G_ + i))
        for i in range(4):
            b("v_exp_f32 v%d, v%d" % (G_ + i, G_ + i))
        for i in range(4):
            b("v_add_f32 v%d, 1.0, v%d" % (G_ + i, G_ + i))
        for i in range(4):
            b("v_rcp_f32 v%d, v%d" % (G_ + i, G_ + i))
        for i in range(4):
            b("v_mul_f32 v%d, v%d, v%d" % (G_ + i, G_ + i, U_ + i))
        d = 64 + tt * 2
        b("v_cvt_pk_bf16_f32 v%d, v%d, v%d\nv_cvt_pk_bf16_f32 v%d, v%d, v%d" % (d, G_, G_ + 1, d + 1, G_ + 2, G_ + 3))
        b("s_add_u32 %s, s75, %d" % (sT0, tt * 6144))
        b("buffer_store_dwordx2 %s, v12, %s, %s offen%s" % (vr(d, 2), WS, sT0, g.st))
    NG = b.lab("nogate")
    b("s_cmp_lg_u32 s80, 0\ns_cbranch_scc1 %s" % NG)
    for tt in range(2):
        sigmoid(b, "v%d" % (70 + tt), "v%d" % acc(2, tt))
    b("s_mov_b64 exec, 0xffff")
    for tt in range(2):
        b("buffer_store_dword v%d, v9, %s, s79 offen offset:%d%s" % (70 + tt, WS, tt * 64, g.st))
    b("s_mov_b64 exec, -1")
    b.label(NG)
    g.stamp(5, 10)
    b("s_add_u32 s75, s75, 12288\ns_add_u32 s79, s79, 128\ns_mov_b32 %s, s77" % sSEG)
    b("s_waitcnt vmcnt(0)")
    g.stamp(6, 11)
    g.flag_store("v13", sSEG, "v15")
    b("s_cmp_lt_u32 %s, %d\ns_cbranch_scc1 %s" % (sSEG, g.nseg, L))
    b("s_branch EXIT")


MEML, QL_C, KL_C, OL_C = 0, 10240, 11264, 12288
N8_MASK = 0x00FF00FF00FF00FF
SCALE_L2E = (192 ** -0.5) * LOG2E


def check_valid(g, regs, tmp, retry, code):
    b = g.b
    regs = list(regs)
    cur = regs.pop(0)
    while regs:
        if len(regs) >= 2:
            b("v_max3_u32 %s, %s, %s, %s" % (tmp, cur, regs[0], regs[1])); regs = regs[2:]
        else:
            b("v_max_u32 %s, %s, %s" % (tmp, cur, regs[0])); regs = []
        cur = tmp
    ok = b.lab("cv")
    b("v_cmp_eq_u32 vcc, -1, %s\ns_cbranch_vccz %s" % (cur, ok))
    g.fail(code)
    b("s_branch %s" % retry)
    b.label(ok)


def xreduce(b, op, v, t, ror8):
    if ror8:
        b("%s_dpp %s, %s, %s row_ror:8 row_mask:0xf bank_mask:0xf" % (op, v, v, v))
    b("v_mov_b32 %s, %s\nv_permlane32_swap_b32 %s, %s\n%s %s, %s, %s" % (t, v, v, t, op, v, v, t))
    b("v_mov_b32 %s, %s\nv_permlane16_swap_b32 %s, %s\n%s %s, %s, %s" % (t, v, v, t, op, v, v, t))


def role_chain(g):
    b = g.b; s = g.sfx; st = g.st
    b.label("ROLE_C%s" % s)
    if skip_role(g, "C"): return
    g.stamp_regs = ("v78", "v79")
    sHH, sH, sC = "s73", "s74", "s75"
    sSd, sSr, sKX, sVT, sKM, sVM = "s76", "s77", "s78", "s79", "s80", "s81"
    sN8, sCE, sNEED, sJW = "s[82:83]", "s84", "s85", "s86"
    vA, vB, vC, vD, vL, vE, vF, vH, vJ, vK, vR1s, vR2s, vFl = ["v%d" % i for i in range(1, 14)]
    vM1, vFM, vFv, vR4s, vDb, vFg, vJg, vKg, vFlag, vT = ["v%d" % i for i in range(64, 74)]
    BIAS, FR, WV = 60, 80, 176
    g.srd(0, P_WQ, 7864320); g.srd(1, P_WK, 7864320); g.srd(2, P_WV, 7864320); g.srd(3, P_WO, 7864320)
    b("s_mul_i32 %s, %s, 0x5556\ns_lshr_b32 %s, %s, 16" % (sHH, sJ, sHH, sHH))
    b("s_mul_i32 %s, %s, 3\ns_sub_u32 %s, %s, %s" % (sC, sHH, sC, sJ, sC))
    b("s_lshl_b32 %s, %s, 2\ns_add_u32 %s, %s, %s" % (sH, sX, sH, sH, sHH))
    b("s_min_u32 %s, %s, 9" % (sJW, sJ))

    def base_qkv(d):
        b("s_mul_i32 %s, %s, 384\ns_lshl_b32 %s, %s, 7\ns_add_u32 %s, %s, %s" % (d, sH, sT3, sC, d, d, sT3))

    def base_wo(half):
        def f(d):
            b("s_mul_i32 %s, %s, %d\ns_lshl_b32 %s, %s, 7\ns_add_u32 %s, %s, %s" % (d, sX, 768 * 1280, sT3, sJW, d, d, sT3))
            if half: b("s_add_u32 %s, %s, %d" % (d, d, 384 * 1280))
        return f
    panels = [dict(srd=SRD[0], base=base_qkv, pitch=12288, nrows=640, perm=True, dst=lambda ks: ("a", ks * 4)),
              dict(srd=SRD[1], base=base_qkv, pitch=12288, nrows=640, perm=True, dst=lambda ks: ("a", 80 + ks * 4)),
              dict(srd=SRD[2], base=base_qkv, pitch=12288, nrows=640, perm=True, dst=lambda ks: ("v", WV + ks * 4)),
              dict(srd=SRD[3], base=base_wo(0), pitch=1280, nrows=384, perm=True, dst=lambda ks: ("a", 160 + ks * 4)),
              dict(srd=SRD[3], base=base_wo(1), pitch=1280, nrows=384, perm=True, dst=lambda ks: ("a", 208 + ks * 4))]
    g.stamp(0)
    g.token_prologue(panels, s == "F")
    g.stamp(1)
    g.srd(0, P_MEM0, 10240)
    b("v_bfe_u32 v16, v0, 1, 3\nv_and_b32 v17, 1, v0\nv_lshrrev_b32 v18, 4, v0")
    b("s_mov_b32 %s, 1280\nv_mul_u32_u24 v16, %s, v16" % (sT0, sT0))
    b("v_lshl_add_u32 v16, v17, 5, v16\nv_lshl_add_u32 v16, v18, 3, v16")
    b("s_lshl_b32 %s, %s, 6\nv_add_u32 v16, %s, v16" % (sT0, sW, sT0))
    for r in range(5):
        b("buffer_load_dwordx2 %s, v16, %s, 0 offen offset:%d" % (vr(20 + 2 * r, 2), SRD[0], r * 256))
    b("s_lshl_b32 %s, %s, 9\nv_lshlrev_b32 v17, 3, v0\nv_add_u32 v17, %s, v17" % (sT0, sW, sT0))
    b("v_and_b32 v30, 15, v0\nv_lshrrev_b32 v31, 4, v0\nv_and_b32 v32, 7, v0\nv_bfe_u32 v33, v0, 3, 1")
    b("v_lshlrev_b32 %s, 4, v32\nv_lshl_add_u32 %s, v31, 7, %s" % (vA, vA, vA))
    b("s_lshr_b32 %s, %s, 1\ns_lshl_b32 %s, %s, 9\ns_and_b32 %s, %s, 1\ns_lshl_b32 %s, %s, 3\ns_add_u32 %s, %s, %s"
      % (sT0, sW, sT0, sT0, sT1, sW, sT1, sT1, sT0, sT0, sT1))
    b("v_add_u32 %s, %s, %s" % (vB, sT0, vA))
    b("v_lshlrev_b32 %s, 4, v0" % vL)
    b("s_mul_i32 %s, %s, 4608\ns_add_u32 %s, %s, %d" % (sT2, sH, sT2, sT2, GG.R3_OFF))
    b("v_add_u32 %s, %s, %s" % (vDb, sT2, vA))
    b("v_lshlrev_b32 v34, 4, v30\nv_lshl_add_u32 v34, v31, 8, v34\nv_add_u32 v34, 512, v34\nv_add_u32 %s, %s, v34" % (vD, sT2))
    b("s_mul_i32 %s, %s, 1536\ns_add_u32 %s, %s, %s" % (sT3, sC, sT2, sT2, sT3))
    W0, W1 = b.lab("cw0"), b.lab("cw1")
    b("s_cmp_eq_u32 %s, 0\ns_cbranch_scc1 %s" % (sW, W0))
    b("s_sub_u32 %s, %s, 1\ns_and_b32 %s, %s, 1\ns_lshl_b32 %s, %s, 7\ns_add_u32 %s, %s, %s\ns_add_u32 %s, %s, 512"
      % (sT3, sW, sT3, sT3, sT3, sT3, sT2, sT2, sT3, sT2, sT2))
    b("v_lshlrev_b32 v34, 4, v32\nv_lshl_add_u32 v34, v31, 8, v34\nv_add_u32 %s, %s, v34" % (vC, sT2))
    for i in range(4): b("v_mov_b32 v%d, 0" % (BIAS + i))
    b("s_branch %s" % W1)
    b.label(W0)
    b("v_add_u32 %s, %s, %s" % (vC, sT2, vA))
    b("v_cmp_le_u32 vcc, 2, v31\nv_mov_b32 v34, %s\nv_mov_b32 v35, 0" % NEG_INF)
    for i in range(4): b("v_cndmask_b32 v%d, v35, v34, vcc" % (BIAS + i))
    b.label(W1)
    b("s_lshl_b32 %s, %s, 2\ns_add_u32 %s, %s, %s\ns_lshl_b32 %s, %s, 8" % (sT0, sC, sT0, sT0, sW, sT0, sT0))
    b("v_and_b32 v34, 1, v31\nv_lshlrev_b32 v34, 7, v34\nv_lshl_add_u32 v34, v30, 3, v34\nv_add_u32 %s, %s, v34" % (vE, sT0))
    b("s_mul_i32 %s, %s, 12288\ns_add_u32 %s, %s, %d" % (sT2, sX, sT2, sT2, GG.R4_OFF))
    b("s_mul_i32 %s, %s, 3072\nv_add_u32 %s, %s, %s\nv_add_u32 %s, %s, %s" % (sT0, sW, vF, sT0, vL, vFg, sT2, vF))
    b("s_mul_i32 %s, %s, 6\ns_lshl_b32 %s, %s, 1\ns_add_u32 %s, %s, %s\ns_lshl_b32 %s, %s, 9\ns_add_u32 %s, %s, %s"
      % (sT0, sHH, sT1, sC, sT0, sT0, sT1, sT0, sT0, sT0, sT0, sT2))
    b("v_add_u32 %s, %s, %s" % (vR4s, sT0, vB))
    b("s_lshl_b32 %s, %s, 2\ns_add_u32 %s, %s, %s\ns_lshl_b32 %s, %s, 12" % (sT0, sJW, sT0, sT0, sW, sT0, sT0))
    if GG.R1_OFF: b("s_add_u32 %s, %s, %d" % (sT0, sT0, GG.R1_OFF))
    b("v_lshl_add_u32 v34, v33, 11, %s\nv_add_u32 %s, %s, v34" % (vA, vH, sT0))
    b("s_lshl_b32 %s, %s, 9\ns_add_u32 %s, %s, %s\nv_add_u32 %s, %s, %s" % (sT1, sX, sT0, sT0, sT1, vR1s, sT0, vA))
    b("s_mul_i32 %s, %s, 10240\ns_add_u32 %s, %s, %d" % (sT2, sX, sT2, sT2, GG.R2_OFF))
    b("s_lshl_b32 %s, %s, 10\ns_add_u32 %s, %s, %s\nv_add_u32 %s, %s, %s" % (sT0, sJW, sT0, sT0, sT2, vR2s, sT0, vB))
    b("s_mul_i32 %s, %s, 2560\nv_add_u32 %s, %s, %s" % (sT0, sW, vJ, sT0, vL))
    b("v_and_b32 v34, 31, v0\nv_lshlrev_b32 v34, 4, v34\ns_add_u32 %s, %s, 2048\nv_add_u32 %s, %s, v34" % (sT0, sT0, vK, sT0))
    b("v_add_u32 %s, %s, %s\nv_add_u32 %s, %s, %s" % (vJg, sT2, vJ, vKg, sT2, vK))
    b("s_lshl_b32 %s, %s, 7\ns_add_u32 %s, %s, %d" % (sT0, sH, sT0, sT0, GG.FA_OFF))
    b("v_lshlrev_b32 v34, 2, v32\nv_add_u32 %s, %s, v34" % (vFl, sT0))
    b("s_lshl_b32 %s, %s, 2\ns_add_u32 %s, %s, %s\ns_lshl_b32 %s, %s, 2\ns_add_u32 %s, %s, %s\ns_add_u32 %s, %s, 32"
      % (sT1, sC, sT1, sT1, sW, sT1, sT1, sT0, sT0, sT1, sT0, sT0))
    b("v_mov_b32 %s, %s\nv_mov_b32 %s, -1\nv_mov_b32 v36, 0\nv_mov_b32 v37, 0" % (vFM, sT0, vM1))
    b("s_mul_i32 %s, %s, %d\ns_add_u32 %s, %s, %d" % (sKX, sH, 64 * 12288, sKX, sKX, GG.KXF_OFF))
    b("s_sub_u32 %s, %s, 1\ns_and_b32 %s, %s, 1\ns_mul_i32 %s, %s, 6144\ns_lshl_b32 %s, %s, 11\ns_add_u32 %s, %s, %s\ns_add_u32 %s, %s, %s"
      % (sT0, sW, sT0, sT0, sT0, sT0, sT1, sC, sT0, sT0, sT1, sKX, sKX, sT0))
    b("s_mul_i32 %s, %s, %d\ns_add_u32 %s, %s, %d" % (sVT, sH, 64 * 12288, sVT, sVT, GG.VT_OFF))
    b("s_lshl_b32 %s, %s, 2\ns_add_u32 %s, %s, %s\ns_lshl_b32 %s, %s, 10\ns_add_u32 %s, %s, %s" % (sT0, sC, sT0, sT0, sW, sT0, sT0, sVT, sVT, sT0))
    b("s_mul_i32 %s, %s, %d\ns_add_u32 %s, %s, %d" % (sKM, sH, 64 * 3072, sKM, sKM, GG.KM_OFF))
    b("s_lshl_b32 %s, %s, 10\ns_add_u32 %s, %s, %s" % (sT0, sC, sKM, sKM, sT0))
    b("s_mul_i32 %s, %s, %d\ns_add_u32 %s, %s, %d" % (sVM, sH, 64 * 3072, sVM, sVM, GG.VMT_OFF))
    b("s_mov_b32 s82, 0x00ff00ff\ns_mov_b32 s83, 0x00ff00ff\ns_mov_b32 %s, %s" % (sCE, f2h(SCALE_L2E)))
    b("s_mov_b32 %s, 0\ns_mov_b32 %s, 0\ns_mov_b32 %s, %d" % (sSEG, sSd, sSr, 2 << GG.SLOT_SHIFT))
    b("s_waitcnt vmcnt(0)")
    for r in range(5):
        b("ds_write_b64 v17, %s offset:%d" % (vr(20 + 2 * r, 2), MEML + r * 2048))

    def prefetch():
        b("buffer_load_dwordx4 v[44:47], %s, %s, %s offen sc1" % (vL, WS, sKX))
        b("buffer_load_dwordx4 v[48:51], %s, %s, %s offen offset:1024 sc1" % (vL, WS, sKX))
        b("buffer_load_dwordx4 v[52:55], %s, %s, %s offen sc1" % (vL, WS, sVT))
        b("s_add_u32 %s, %s, 12288\ns_add_u32 %s, %s, 12288" % (sKX, sKX, sVT, sVT))
    b("s_mov_b32 %s, 1" % sNEED)
    g.poll_flags(vFl, sNEED, vFlag, 20)
    prefetch()
    b("s_waitcnt vmcnt(0) lgkmcnt(0)")
    g.stamp(15)

    def mem_mfma(tiles):
        for ks in range(8):
            b("ds_read_b128 %s, %s offset:%d" % (vr(FR + 4 * ks, 4), vA, MEML + ks * 512))
        for ks in range(20):
            b("s_waitcnt lgkmcnt(%d)" % min(7, 19 - ks))
            fr = vr(FR + 4 * ks, 4)
            for acc, wt, sw in tiles:
                c = "0" if ks == 0 else vr(acc, 4)
                b("v_mfma_f32_16x16x32_bf16 %s, %s, %s, %s" % ((vr(acc, 4),) + ((fr, wt(ks)) if sw else (wt(ks), fr)) + (c,)))
            if ks + 8 < 20:
                b("ds_read_b128 %s, %s offset:%d" % (vr(FR + 4 * (ks + 8), 4), vA, MEML + (ks + 8) * 512))
    wq = lambda ks: ar(ks * 4, 4)
    wk = lambda ks: ar(80 + ks * 4, 4)
    wv = lambda ks: vr(WV + ks * 4, 4)

    def cvt4(d, a):
        b("v_cvt_pk_bf16_f32 v%d, v%d, v%d\nv_cvt_pk_bf16_f32 v%d, v%d, v%d" % (d, a, a + 1, d + 1, a + 2, a + 3))

    g.acc_init()
    LOOP = b.lab("cloop")
    if g.nseg > 1:
        b.label(LOOP)
        b("s_barrier")
        g.acc(0)
        mem_mfma([(16, wq, False), (20, wk, False)])
        cvt4(28, 16); cvt4(30, 20)
        b("ds_write_b64 %s, v[28:29] offset:%d\nds_write_b64 %s, v[30:31] offset:%d" % (vB, QL_C, vB, KL_C))
        b("s_waitcnt lgkmcnt(0)\ns_barrier")
        g.acc(1)
        NOSC, TOK = b.lab("nosc"), b.lab("tok")
        b("s_cmp_eq_u32 %s, 3\ns_cbranch_scc1 %s" % (sW, NOSC))
        b("ds_read_b128 v[160:163], %s offset:%d\nds_read_b128 v[164:167], %s offset:%d" % (vA, QL_C, vA, QL_C + 512))
        b("s_cmp_lg_u32 %s, 0\ns_cbranch_scc1 %s" % (sW, TOK))
        b("ds_read_b128 v[44:47], %s offset:%d\nds_read_b128 v[48:51], %s offset:%d" % (vA, KL_C, vA, KL_C + 512))
        b.label(TOK)
        b("s_waitcnt lgkmcnt(0)")
        b("v_mfma_f32_16x16x32_bf16 v[56:59], v[44:47], v[160:163], %s" % vr(BIAS, 4))
        b("v_mfma_f32_16x16x32_bf16 v[56:59], v[48:51], v[164:167], v[56:59]")
        b("v_min_u32 v56, -2, v56")
        b("buffer_store_dwordx4 v[56:59], %s, %s, %s offen%s" % (vC, WS, sSd, st))
        b("buffer_store_dword %s, %s, %s, %s offen%s" % (vM1, vC, WS, sSr, st))
        b.label(NOSC)
        b("buffer_store_dwordx2 v[30:31], %s, %s, %s offen%s" % (vB, WS, sKM, st))
        for ks in range(20):
            b("v_mfma_f32_16x16x32_bf16 v[24:27], %s, %s, %s" % (vr(FR + 4 * ks, 4), wv(ks), "0" if ks == 0 else "v[24:27]"))
        cvt4(32, 24)
        b("buffer_store_dwordx2 v[32:33], %s, %s, %s offen%s" % (vE, WS, sVM, st))
        b("s_add_u32 %s, %s, 3072\ns_add_u32 %s, %s, 3072\ns_add_u32 %s, %s, 1" % (sKM, sKM, sVM, sVM, sNEED, sSEG))
        g.acc(2)
        P3 = b.lab("p3")
        b.label(P3)
        for c in range(3):
            b("buffer_load_dwordx4 %s, %s, %s, %s offen offset:%d sc1" % (vr(FR + 4 * c, 4), vD, WS, sSd, c * 1536))
            b("buffer_load_dwordx4 %s, %s, %s, %s offen offset:%d sc1" % (vr(FR + 12 + 4 * c, 4), vDb, WS, sSd, c * 1536))
        b("buffer_load_dword %s, %s, %s, 0 offen sc1" % (vFlag, vFl, WS))
        b("s_waitcnt vmcnt(0)")
        check_valid(g, ["v%d" % (FR + 4 * i) for i in range(6)], vT, P3, 21)
        g.flag_store(vFM, sNEED, vFv)
        g.acc(3)
        for i in range(4):
            b("v_add_f32 v%d, v%d, v%d\nv_add_f32 v%d, v%d, v%d" % (16 + i, FR + i, FR + 4 + i, 20 + i, FR + 12 + i, FR + 16 + i))
        for i in range(4):
            b("v_add_f32 v%d, v%d, v%d\nv_add_f32 v%d, v%d, v%d" % (16 + i, 16 + i, FR + 8 + i, 20 + i, 20 + i, FR + 20 + i))
        b("v_max3_f32 v24, v16, v17, v18\nv_max3_f32 v25, v19, v20, v21\nv_max3_f32 v24, v24, v22, v23\nv_max_f32 v24, v24, v25")
        xreduce(b, "v_max_f32", "v24", "v25", True)
        b("v_mul_f32 v24, %s, v24" % sCE)
        for i in range(8): b("v_fma_f32 v%d, v%d, %s, -v24" % (16 + i, 16 + i, sCE))
        for i in range(8): b("v_exp_f32 v%d, v%d" % (16 + i, 16 + i))
        b("v_add_f32 v24, v16, v17\nv_add_f32 v25, v18, v19\nv_add_f32 v26, v20, v21\nv_add_f32 v27, v22, v23")
        b("v_add_f32 v24, v24, v25\nv_add_f32 v26, v26, v27\nv_fma_f32 v24, v26, 0.5, v24")
        xreduce(b, "v_add_f32", "v24", "v25", True)
        b("v_rcp_f32 v24, v24")
        for i in range(8): b("v_mul_f32 v%d, v%d, v24" % (16 + i, 16 + i))
        cvt4(34, 20); cvt4(28, 16)
        b("v_mov_b32_dpp v30, v28 row_ror:8 row_mask:0xf bank_mask:0xf\nv_mov_b32_dpp v31, v29 row_ror:8 row_mask:0xf bank_mask:0xf")
        b("v_mfma_f32_16x16x32_bf16 v[56:59], v[32:35], v[34:37], 0")
        b("v_mfma_f32_16x16x32_bf16 v[56:59], v[52:55], v[28:31], v[56:59]")
        cvt4(38, 56)
        b("v_min_u32 v38, -2, v38\ns_mov_b64 exec, %s" % sN8)
        b("buffer_store_dwordx2 v[38:39], %s, %s, %s offen%s" % (vR4s, WS, sSd, st))
        b("buffer_store_dword %s, %s, %s, %s offen%s" % (vM1, vR4s, WS, sSr, st))
        b("s_mov_b64 exec, -1")
        g.acc(4)
        NOWO = b.lab("nowo")
        b("s_cmp_ge_u32 %s, 10\ns_cbranch_scc1 %s" % (sJ, NOWO))
        P4 = b.lab("p4")
        b.label(P4)
        for i in range(3):
            b("buffer_load_dwordx4 %s, %s, %s, %s offen offset:%d sc1" % (vr(104 + 4 * i, 4), vFg, WS, sSd, i * 1024))
        b("s_waitcnt vmcnt(0)")
        check_valid(g, ["v%d" % (104 + 4 * i + k) for i in range(3) for k in (0, 2)], vT, P4, 22)
        for i in range(3):
            b("ds_write_b128 %s, %s offset:%d" % (vF, vr(104 + 4 * i, 4), OL_C + i * 1024))
        b("s_waitcnt lgkmcnt(0)\ns_barrier")
        g.acc(5)
        for f in range(8):
            b("ds_read_b128 %s, %s offset:%d" % (vr(FR + 4 * f, 4), vA, OL_C + f * 512))
        for f in range(24):
            b("s_waitcnt lgkmcnt(%d)" % min(7, 23 - f))
            acc = vr(16 + 4 * (f & 1), 4)
            b("v_mfma_f32_16x16x32_bf16 %s, %s, %s, %s" % (acc, ar(160 + 4 * f, 4), vr(FR + 4 * f, 4), "0" if f < 2 else acc))
            if f + 8 < 24:
                b("ds_read_b128 %s, %s offset:%d" % (vr(FR + 4 * (f + 8), 4), vA, OL_C + (f + 8) * 512))
        for i in range(4): b("v_add_f32 v%d, v%d, v%d" % (16 + i, 16 + i, 20 + i))
        b("v_min_u32 v16, -2, v16")
        b("buffer_store_dwordx4 v[16:19], %s, %s, %s offen sc1" % (vR1s, WS, sSd))
        b("buffer_store_dword %s, %s, %s, %s offen sc1" % (vM1, vR1s, WS, sSr))
        b.label(NOWO)
        g.acc(6)
        RDY = b.lab("rdy")
        b("s_add_u32 %s, %s, 2" % (sNEED, sSEG))
        b("v_cmp_gt_u32 vcc, %s, %s\ns_cbranch_vccz %s" % (sNEED, vFlag, RDY))
        g.poll_flags(vFl, sNEED, vFlag, 23)
        b.label(RDY)
        prefetch()
        NOH1 = b.lab("noh1")
        b("s_cmp_ge_u32 %s, 10\ns_cbranch_scc1 %s" % (sJ, NOH1))
        P1 = b.lab("p1")
        b.label(P1)
        for i in range(4):
            b("buffer_load_dwordx4 %s, %s, %s, %s offen offset:%d sc1" % (vr(FR + 4 * i, 4), vH, WS, sSd, i * 512))
        b("s_waitcnt vmcnt(0)")
        check_valid(g, ["v%d" % (FR + 4 * i) for i in range(4)], vT, P1, 24)
        g.acc(7)
        for i in range(4):
            b("v_add_f32 v%d, v%d, v%d\nv_add_f32 v%d, v%d, v%d" % (16 + i, FR + i, FR + 4 + i, 20 + i, FR + 8 + i, FR + 12 + i))
        for i in range(4): b("v_add_f32 v%d, v%d, v%d" % (16 + i, 16 + i, 20 + i))
        for i in range(4): b("v_add_f32_dpp v%d, v%d, v%d row_ror:8 row_mask:0xf bank_mask:0xf" % (16 + i, 16 + i, 16 + i))
        cvt4(28, 16)
        b("v_min_u32 v28, -2, v28")
        b("buffer_store_dwordx2 v[28:29], %s, %s, %s offen%s" % (vR2s, WS, sSd, st))
        b("buffer_store_dword %s, %s, %s, %s offen%s" % (vM1, vR2s, WS, sSr, st))
        b.label(NOH1)
        g.acc(8)
        P2 = b.lab("p2")
        b.label(P2)
        b("buffer_load_dwordx4 v[96:99], %s, %s, %s offen sc1" % (vJg, WS, sSd))
        b("buffer_load_dwordx4 v[100:103], %s, %s, %s offen offset:1024 sc1" % (vJg, WS, sSd))
        b("buffer_load_dwordx4 v[104:107], %s, %s, %s offen sc1" % (vKg, WS, sSd))
        b("s_waitcnt vmcnt(0)")
        check_valid(g, ["v%d" % (96 + 4 * i + k) for i in range(3) for k in (0, 2)], vT, P2, 25)
        b("ds_write_b128 %s, v[96:99] offset:%d\nds_write_b128 %s, v[100:103] offset:%d\nds_write_b128 %s, v[104:107] offset:%d"
          % (vJ, MEML, vJ, MEML + 1024, vK, MEML))
        b("s_add_u32 %s, %s, 1\ns_and_b32 %s, %s, 3\ns_lshl_b32 %s, %s, %d\ns_xor_b32 %s, %s, %d"
          % (sSEG, sSEG, sSd, sSEG, sSd, sSd, GG.SLOT_SHIFT, sSr, sSd, 2 << GG.SLOT_SHIFT))
        b("s_waitcnt lgkmcnt(0)")
        g.acc(9)
        b("s_cmp_lt_u32 %s, %d\ns_cbranch_scc1 %s" % (sSEG, g.nseg - 1, LOOP))
    b("s_barrier")
    mem_mfma([(20, wk, False), (24, wv, True)])
    cvt4(30, 20); cvt4(32, 24)
    b("buffer_store_dwordx2 v[30:31], %s, %s, %s offen%s" % (vB, WS, sKM, st))
    b("buffer_store_dwordx2 v[32:33], %s, %s, %s offen%s" % (vE, WS, sVM, st))
    b("s_add_u32 %s, %s, 1\ns_waitcnt vmcnt(0)" % (sNEED, sSEG))
    g.flag_store(vFM, sNEED, vFv)
    g.stamp(12)
    g.acc_dump()
    b("s_branch EXIT")
    g.stamp_regs = ("v254", "v255")


XB1_Q, QL_Q, KXL, VTL, KML, VML = 40960, 81920, 94208, 106496, 118784, 121856


def flag_wait(g, vaddr, vflag, sneed, mask, code):
    b = g.b
    L, D = b.lab("fw"), b.lab("fwd")
    b.label(L)
    b("v_cmp_gt_u32 vcc, %s, %s\ns_and_b32 %s, vcc_lo, 0x%x\ns_cbranch_scc0 %s" % (sneed, vflag, sT0, mask, D))
    g.fail(code)
    b("buffer_load_dword %s, %s, %s, 0 offen sc1\ns_waitcnt vmcnt(0)\ns_branch %s" % (vflag, vaddr, WS, L))
    b.label(D)


def role_q(g):
    b = g.b; s = g.sfx; st = g.st
    b.label("ROLE_Q%s" % s)
    if skip_role(g, "Q"): return
    sHH, sH, sKX, sXB, sNX, sVT, sKM, sVM, sOX, sEARLY, sNEED, sCE = (
        "s73", "s74", "s75", "s76", "s77", "s79", "s80", "s81", "s82", "s83", "s85", "s84")
    vXD, vL, vQW, vFO, vXA, vFA, vFlag, vKM, vVM, vKA, vQA = "v10", "v11", "v12", "v13", "v14", "v76", "v77", "v78", "v79", "v8", "v9"
    QF, KF, MF, SC, BI, VF, VMF, PT, PM = 80, 104, 152, 176, 188, 200, 224, 240, 244
    g.srd(0, P_WQ, 7864320)
    b("s_sub_u32 %s, %s, 20" % (sHH, sJ))
    b("s_lshl_b32 %s, %s, 2\ns_add_u32 %s, %s, %s" % (sH, sX, sH, sH, sHH))
    def base(p):
        return lambda d: b("s_mul_i32 %s, %s, 384\ns_add_u32 %s, %s, %d" % (d, sH, d, d, p * 128))
    panels = [dict(srd=SRD[0], base=base(p), pitch=12288, nrows=640, perm=False,
                   dst=(lambda ks, p=p: ("a", (p * 20 + ks) * 4))) for p in range(3)]
    g.stamp(0)
    g.token_prologue(panels, s == "F")
    g.stamp(1)
    g.xdma_setup(vXD)
    b("v_lshlrev_b32 %s, 4, v0" % vL)
    b("v_and_b32 v16, 15, v0\nv_lshrrev_b32 v17, 4, v0\nv_and_b32 v18, 7, v0")
    b("s_lshr_b32 %s, %s, 1\ns_lshl_b32 %s, %s, 10" % (sT0, sW, sT0, sT0))
    b("s_and_b32 %s, %s, 1\ns_lshl_b32 %s, %s, 3\ns_add_u32 %s, %s, %s" % (sT1, sW, sT1, sT1, sT0, sT0, sT1))
    b("s_add_u32 %s, %s, %d\nv_add_u32 %s, %s, %s" % (sT0, sT0, QL_Q, vQW, sT0, vL))
    b("s_and_b32 %s, %s, 1\ns_mul_i32 %s, %s, 6144\ns_add_u32 %s, %s, %d\nv_add_u32 %s, %s, %s" % (sT0, sW, sT0, sT0, sT0, sT0, QL_Q, vQA, sT0, vL))
    b("v_add_u32 %s, %d, %s" % (vKA, KXL, vL))
    b("v_lshlrev_b32 %s, 4, v18\nv_lshl_add_u32 %s, v17, 7, %s\nv_add_u32 %s, %d, %s" % (vKM, vKM, vKM, vKM, KML, vKM))
    b("s_lshr_b32 %s, %s, 1\ns_mul_i32 %s, %s, 1536\ns_add_u32 %s, %s, %d" % (sT0, sW, sT0, sT0, sT0, sT0, VML))
    b("v_and_b32 v19, 1, v17\nv_lshlrev_b32 v19, 7, v19\nv_lshl_add_u32 v19, v16, 3, v19\nv_add_u32 %s, %s, v19" % (vVM, sT0))
    b("v_mov_b32 v20, %s\nv_mov_b32 v21, 0\nv_cmp_le_u32 vcc, 2, v17" % NEG_INF)
    for i in range(4): b("v_cndmask_b32 v%d, v21, v20, vcc" % (BI + i))
    b("s_and_b32 %s, %s, 1\ns_lshl_b32 %s, %s, 4\nv_add_u32 v22, %s, v16" % (sT0, sW, sT0, sT0, sT0))
    for tt in range(2):
        for i in range(4):
            b("v_lshl_add_u32 v23, v17, 2, %d\nv_cmp_gt_u32 vcc, v23, v22\nv_cndmask_b32 v%d, v21, v20, vcc" % (16 * tt + i, BI + 4 + 4 * tt + i))
    b("v_mov_b32 v%d, 0\nv_mov_b32 v%d, 0" % (PM + 2, PM + 3))
    for i in range(VMF, VMF + 16): b("v_mov_b32 v%d, 0" % i)
    b("s_lshl_b32 %s, %s, 7\ns_add_u32 %s, %s, %d" % (sT0, sH, sT0, sT0, GG.FA_OFF))
    b("v_min_u32 v19, 19, v0\nv_lshlrev_b32 v19, 2, v19\nv_add_u32 %s, %s, v19" % (vFA, sT0))
    b("s_lshl_b32 %s, %s, 7\ns_lshl_b32 %s, %s, 4\ns_add_u32 %s, %s, %s" % (sT0, sX, sT1, sHH, sT0, sT0, sT1))
    b("s_lshl_b32 %s, %s, 2\ns_add_u32 %s, %s, %s\ns_add_u32 %s, %s, %d\nv_mov_b32 %s, %s" % (sT1, sW, sT0, sT0, sT1, sT0, sT0, GG.FO_OFF, vFO, sT0))
    b("s_mul_i32 %s, %s, 3072" % (sT2, sW))
    b("s_mul_i32 %s, %s, %d\ns_add_u32 %s, %s, %d\ns_add_u32 %s, %s, %s" % (sKX, sH, 64 * 12288, sKX, sKX, GG.KXF_OFF, sKX, sKX, sT2))
    b("s_add_u32 %s, %s, %d" % (sVT, sKX, GG.VT_OFF - GG.KXF_OFF))
    b("s_mul_i32 %s, %s, %d\ns_add_u32 %s, %s, %d" % (sKM, sH, 64 * 3072, sKM, sKM, GG.KM_OFF))
    b("s_add_u32 %s, %s, %d" % (sVM, sKM, GG.VMT_OFF - GG.KM_OFF))
    b("s_mul_i32 %s, %s, %d\ns_add_u32 %s, %s, %d" % (sOX, sX, 64 * 49152, sOX, sOX, GG.OXF_OFF))
    b("s_and_b32 %s, %s, 1\ns_mul_i32 %s, %s, 24576\ns_add_u32 %s, %s, %s" % (sT0, sW, sT0, sT0, sOX, sOX, sT0))
    b("s_mul_i32 %s, %s, 6\ns_lshr_b32 %s, %s, 1\ns_mul_i32 %s, %s, 3\ns_add_u32 %s, %s, %s\ns_lshl_b32 %s, %s, 10\ns_add_u32 %s, %s, %s"
      % (sT0, sHH, sT1, sW, sT1, sT1, sT0, sT0, sT1, sT0, sT0, sOX, sOX, sT0))
    b("s_mov_b32 %s, %s" % (sCE, f2h(SCALE_L2E)))
    b("s_mov_b32 %s, 0\ns_mov_b32 %s, 0" % (sSEG, sXB))
    g.xdma_issue(vXD, sSEG, sXB)
    b("buffer_load_dword %s, %s, %s, 0 offen sc1" % (vFlag, vFA, WS))
    b("s_waitcnt vmcnt(0)")

    def mem_dma():
        A, B_ = b.lab("md"), b.lab("mdd")
        b("s_lshl_b32 %s, %s, 10" % (sT1, sW))
        b("s_cmp_eq_u32 %s, 3\ns_cbranch_scc1 %s" % (sW, A))
        b("s_add_u32 m0, %s, %d\ns_add_u32 %s, %s, %s" % (sT1, KML, sT2, sKM, sT1))
        b("buffer_load_dwordx4 %s, %s, %s offen sc1 lds" % (vL, WS, sT2))
        b.label(A)
        b("s_cmp_eq_u32 %s, 0\ns_cbranch_scc1 %s" % (sW, B_))
        b("s_sub_u32 %s, %s, 1024\ns_add_u32 m0, %s, %d\ns_add_u32 %s, %s, %s" % (sT1, sT1, sT1, VML, sT2, sVM, sT1))
        b("buffer_load_dwordx4 %s, %s, %s offen sc1 lds" % (vL, WS, sT2))
        b.label(B_)

    g.acc_init()
    L = b.lab("qloop")
    b.label(L)
    b("s_barrier")
    g.acc(0)
    b("s_add_u32 %s, %s, 1" % (sNEED, sSEG))
    flag_wait(g, vFA, vFlag, sNEED, 0xFF, 30)
    b("s_mul_i32 %s, %s, 3072\ns_add_u32 m0, %s, %d" % (sT1, sW, sT1, KXL))
    for i in range(3): b("buffer_load_dwordx4 %s, %s, %s offen offset:%d sc1 lds" % (vL, WS, sKX, i * 1024))
    b("s_add_u32 m0, %s, %d" % (sT1, VTL))
    for i in range(3): b("buffer_load_dwordx4 %s, %s, %s offen offset:%d sc1 lds" % (vL, WS, sVT, i * 1024))
    LATE = b.lab("qlate")
    b("v_cmp_gt_u32 vcc, %s, %s\ns_and_b32 %s, vcc_lo, 0xfff00\ns_cbranch_scc1 %s" % (sNEED, vFlag, sEARLY, LATE))
    mem_dma()
    b.label(LATE)
    g.acc(1)
    b("v_add_u32 %s, %s, %s" % (vXA, sXB, vL))
    b("s_xor_b32 %s, %s, %d\ns_add_u32 %s, %s, 1" % (sXB, sXB, XB1_Q, sNX, sSEG))
    side = g.xdma_side(vXD, sNX, sXB)
    acc = lambda p, tt: 40 + (p * 2 + tt) * 4
    g.xloop(vXA, 3, lambda p, ks: ar((p * 20 + ks) * 4, 4), acc, side=side)
    g.acc(2)
    for p in range(3):
        for tt in range(2):
            a = acc(p, tt); d = 64 + (p * 2 + tt) * 2
            b("v_cvt_pk_bf16_f32 v%d, v%d, v%d\nv_cvt_pk_bf16_f32 v%d, v%d, v%d" % (d, a, a + 1, d + 1, a + 2, a + 3))
            b("ds_write_b64 %s, %s offset:%d" % (vQW, vr(d, 2), tt * 6144 + p * 2048))
    DONE = b.lab("qmem")
    b("s_cmp_eq_u32 %s, 0\ns_cbranch_scc1 %s" % (sEARLY, DONE))
    b("buffer_load_dword %s, %s, %s, 0 offen sc1\ns_waitcnt vmcnt(0)" % (vFlag, vFA, WS))
    flag_wait(g, vFA, vFlag, sNEED, 0xFFF00, 31)
    mem_dma()
    b.label(DONE)
    b("s_waitcnt vmcnt(0) lgkmcnt(0)\ns_barrier")
    g.acc(3)
    for f in range(6):
        b("ds_read_b128 %s, %s offset:%d" % (vr(QF + 4 * f, 4), vQA, f * 1024))
        b("ds_read_b128 %s, %s offset:%d" % (vr(MF + 4 * f, 4), vKM, f * 512))
        for tt in range(2):
            b("ds_read_b128 %s, %s offset:%d" % (vr(KF + 4 * (tt * 6 + f), 4), vKA, (tt * 6 + f) * 1024))
        if f >= 2:
            b("s_waitcnt lgkmcnt(8)")
            ff = f - 2
            for t, kf in enumerate((MF + 4 * ff, KF + 4 * ff, KF + 4 * (6 + ff))):
                b("v_mfma_f32_16x16x32_bf16 %s, %s, %s, %s" % (vr(SC + 4 * t, 4), vr(kf, 4), vr(QF + 4 * ff, 4), vr((BI if ff == 0 else SC) + 4 * t, 4)))
    for ff in (4, 5):
        b("s_waitcnt lgkmcnt(%d)" % (4 if ff == 4 else 0))
        for t, kf in enumerate((MF + 4 * ff, KF + 4 * ff, KF + 4 * (6 + ff))):
            b("v_mfma_f32_16x16x32_bf16 %s, %s, %s, %s" % (vr(SC + 4 * t, 4), vr(kf, 4), vr(QF + 4 * ff, 4), vr(SC + 4 * t, 4)))
    b("s_lshr_b32 %s, %s, 1\ns_mul_i32 %s, %s, 6144\ns_add_u32 %s, %s, %d\nv_add_u32 v16, %s, %s" % (sT0, sW, sT0, sT0, sT0, sT0, VTL, sT0, vL))
    for e in range(6):
        b("ds_read_b128 %s, v16 offset:%d" % (vr(VF + 4 * e, 4), e * 1024))
        b("ds_read_b64 %s, %s offset:%d" % (vr(VMF + 2 * e, 2), vVM, e * 256))
    S = lambda i: "v%d" % (SC + i)
    b("v_max3_f32 v24, %s, %s, %s\nv_max3_f32 v25, %s, %s, %s" % (S(0), S(1), S(2), S(3), S(4), S(5)))
    b("v_max3_f32 v24, v24, %s, %s\nv_max3_f32 v25, v25, %s, %s" % (S(6), S(7), S(8), S(9)))
    b("v_max3_f32 v24, v24, %s, %s\nv_max_f32 v24, v24, v25" % (S(10), S(11)))
    xreduce(b, "v_max_f32", "v24", "v25", False)
    b("v_mul_f32 v24, %s, v24" % sCE)
    for i in range(12): b("v_fma_f32 %s, %s, %s, -v24" % (S(i), S(i), sCE))
    for i in range(12): b("v_exp_f32 %s, %s" % (S(i), S(i)))
    b("v_add_f32 v24, %s, %s\nv_add_f32 v25, %s, %s\nv_add_f32 v26, %s, %s" % (S(0), S(1), S(2), S(3), S(4), S(5)))
    b("v_add_f32 v27, %s, %s\nv_add_f32 v28, %s, %s\nv_add_f32 v29, %s, %s" % (S(6), S(7), S(8), S(9), S(10), S(11)))
    b("v_add_f32 v24, v24, v25\nv_add_f32 v26, v26, v27\nv_add_f32 v28, v28, v29\nv_add_f32 v24, v24, v26\nv_add_f32 v24, v24, v28")
    xreduce(b, "v_add_f32", "v24", "v25", False)
    b("v_rcp_f32 v24, v24")
    for i in range(12): b("v_mul_f32 %s, %s, v24" % (S(i), S(i)))
    b("v_cvt_pk_bf16_f32 v%d, %s, %s\nv_cvt_pk_bf16_f32 v%d, %s, %s" % (PM, S(0), S(1), PM + 1, S(2), S(3)))
    for k in range(4): b("v_cvt_pk_bf16_f32 v%d, %s, %s" % (PT + k, S(4 + 2 * k), S(5 + 2 * k)))
    b("s_waitcnt lgkmcnt(0)")
    for e in range(6):
        b("v_mfma_f32_16x16x32_bf16 %s, %s, %s, 0" % (vr(40 + 4 * e, 4), vr(VF + 4 * e, 4), vr(PT, 4)))
    for e in range(6):
        b("v_mfma_f32_16x16x32_bf16 %s, %s, %s, %s" % (vr(40 + 4 * e, 4), vr(VMF + 2 * e, 4), vr(PM, 4), vr(40 + 4 * e, 4)))
    for i in range(3):
        for k in range(2):
            a = 40 + 8 * i + 4 * k; d = 64 + 4 * i + 2 * k
            b("v_cvt_pk_bf16_f32 v%d, v%d, v%d\nv_cvt_pk_bf16_f32 v%d, v%d, v%d" % (d, a, a + 1, d + 1, a + 2, a + 3))
        b("buffer_store_dwordx4 %s, %s, %s, %s offen offset:%d%s" % (vr(64 + 4 * i, 4), vL, WS, sOX, i * 1024, st))
    b("buffer_load_dword %s, %s, %s, 0 offen sc1" % (vFlag, vFA, WS))
    b("s_add_u32 %s, %s, 12288\ns_add_u32 %s, %s, 12288\ns_add_u32 %s, %s, 3072\ns_add_u32 %s, %s, 3072\ns_add_u32 %s, %s, 49152"
      % (sKX, sKX, sVT, sVT, sKM, sKM, sVM, sVM, sOX, sOX))
    g.acc(4)
    b("s_mov_b32 %s, %s\ns_waitcnt vmcnt(0)" % (sSEG, sNX))
    g.flag_store(vFO, sSEG, "v15")
    g.acc(5)
    b("s_cmp_lt_u32 %s, %d\ns_cbranch_scc1 %s" % (sSEG, g.nseg, L))
    g.stamp(12)
    g.acc_dump()
    b("s_branch EXIT")


OL_W, HL_W = 0, 49152


def role_w(g):
    b = g.b; s = g.sfx; st = g.st
    b.label("ROLE_W%s" % s)
    if skip_role(g, "W"): return
    sNQ, sOX, sHX, sGX, sPS, sPR, sOUT, sNEED = "s73", "s75", "s76", "s77", "s78", "s79", "s80", "s81"
    vL, vFO, vFP, vFPs, vPS, vPR, vOUT, vGX, vFlag, vFlagP = "v10", "v11", "v12", "v13", "v14", "v15", "v8", "v9", "v76", "v77"
    AA, AB, RD, GT = 40, 56, 80, 78
    g.srd(0, P_WO, 7864320); g.srd(1, P_WD, 1966080); g.srd(3, P_OUT, 2621440)
    b("s_sub_u32 %s, %s, 27" % (sNQ, sJ))
    def base_o(p, half):
        return lambda d: b("s_mul_i32 %s, %s, %d\ns_lshl_b32 %s, %s, 8\ns_add_u32 %s, %s, %s\ns_add_u32 %s, %s, %d"
                           % (d, sX, 768 * 1280, sT3, sNQ, d, d, sT3, d, d, half * 384 * 1280 + p * 128))
    def base_d(p):
        return lambda d: b("s_mul_i32 %s, %s, %d\ns_lshl_b32 %s, %s, 8\ns_add_u32 %s, %s, %s\ns_add_u32 %s, %s, %d"
                           % (d, sX, 192 * 1280, sT3, sNQ, d, d, sT3, d, d, p * 128))
    panels = [dict(srd=SRD[0], base=base_o(p, h), pitch=1280, nrows=384, perm=True,
                   dst=(lambda ks, p=p, h=h: ("a", (p * 24 + h * 12 + ks) * 4))) for p in range(2) for h in range(2)]
    panels += [dict(srd=SRD[1], base=base_d(p), pitch=1280, nrows=192, perm=True,
                    dst=(lambda ks, p=p: ("a", 192 + (p * 6 + ks) * 4))) for p in range(2)]
    g.stamp(0)
    g.token_prologue(panels, s == "F")
    g.stamp(1)
    b("v_lshlrev_b32 %s, 4, v0" % vL)
    b("v_and_b32 v16, 15, v0\nv_lshrrev_b32 v17, 4, v0\nv_and_b32 v18, 31, v0\nv_lshrrev_b32 v19, 5, v0")
    b("s_lshl_b32 %s, %s, 7\ns_add_u32 %s, %s, %d" % (sT0, sX, sT0, sT0, GG.FO_OFF))
    b("v_min_u32 v20, 27, v0\nv_lshlrev_b32 v20, 2, v20\nv_add_u32 %s, %s, v20" % (vFO, sT0))
    b("s_lshl_b32 %s, %s, 7\ns_add_u32 %s, %s, %d" % (sT0, sNQ, sT0, sT0, GG.FP_OFF))
    b("v_lshlrev_b32 v20, 2, v18\nv_add_u32 %s, %s, v20" % (vFP, sT0))
    b("s_lshl_b32 %s, %s, 4\ns_lshl_b32 %s, %s, 2\ns_add_u32 %s, %s, %s\ns_add_u32 %s, %s, %s\nv_mov_b32 %s, %s"
      % (sT1, sX, sT2, sW, sT0, sT0, sT1, sT0, sT0, sT2, vFPs, sT0))
    b("v_lshrrev_b32 v20, 2, v16\nv_lshlrev_b32 v20, 14, v20\nv_and_b32 v21, 3, v16\nv_lshl_add_u32 v20, v21, 9, v20")
    b("v_lshl_add_u32 v20, v17, 4, v20\ns_lshl_b32 %s, %s, 6\nv_add_u32 %s, %s, v20" % (sT0, sW, vPS, sT0))
    b("v_lshlrev_b32 v20, 11, v19\nv_lshl_add_u32 v20, v18, 4, v20\ns_lshl_b32 %s, %s, 9\nv_add_u32 %s, %s, v20" % (sT0, sW, vPR, sT0))
    b("v_lshlrev_b32 %s, 3, v18\nv_lshlrev_b32 %s, 2, v16" % (vOUT, vGX))
    b("s_mul_i32 %s, %s, %d\ns_add_u32 %s, %s, %d" % (sOX, sX, 64 * 49152, sOX, sOX, GG.OXF_OFF))
    b("s_mul_i32 %s, %s, 12288\ns_add_u32 %s, %s, %s" % (sT0, sW, sOX, sOX, sT0))
    b("s_mul_i32 %s, %s, %d\ns_add_u32 %s, %s, %d" % (sHX, sX, 64 * 12288, sHX, sHX, GG.HXF_OFF))
    b("s_mul_i32 %s, %s, 3072\ns_add_u32 %s, %s, %s" % (sT0, sW, sHX, sHX, sT0))
    b("s_lshl_b32 %s, %s, 13\ns_add_u32 %s, %s, %d" % (sGX, sX, sGX, sGX, GG.GX_OFF))
    b("s_lshl_b32 %s, %s, 17\ns_add_u32 %s, %s, %d" % (sPS, sNQ, sPS, sPS, GG.PART_OFF))
    b("s_lshl_b32 %s, %s, 14\ns_add_u32 %s, %s, %s\ns_sub_u32 %s, %s, %d" % (sT0, sX, sPR, sPS, sT0, sPR, sPR, 5 * 131072))
    b("s_lshl_b32 %s, %s, 11\ns_add_u32 %s, %s, %s" % (sT0, sX, sPS, sPS, sT0))
    b("s_lshl_b32 %s, %s, 2\ns_add_u32 %s, %s, %s\ns_mul_i32 %s, %s, 1280\ns_lshl_b32 %s, %s, 8\ns_add_u32 %s, %s, %s\ns_sub_u32 %s, %s, 40960"
      % (sT0, sX, sT0, sT0, sW, sT0, sT0, sT1, sNQ, sOUT, sT0, sT1, sOUT, sOUT))
    b("s_mov_b32 %s, 0" % sSEG)
    b("buffer_load_dword %s, %s, %s, 0 offen sc1\ns_waitcnt vmcnt(0)" % (vFlag, vFO, WS))

    def reduce_loads():
        for i in range(4):
            b("s_add_u32 %s, %s, %d" % (sT0, sPR, i * 4096))
            b("buffer_load_dwordx4 %s, %s, %s, %s offen sc1" % (vr(RD + 4 * i, 4), vPR, WS, sT0))

    def reduce_math():
        for k in range(4):
            b("v_add_f32 v%d, v%d, v%d\nv_add_f32 v%d, v%d, v%d" % (RD + k, RD + k, RD + 4 + k, RD + 8 + k, RD + 8 + k, RD + 12 + k))
        for k in range(4): b("v_add_f32 v%d, v%d, v%d" % (RD + k, RD + k, RD + 8 + k))
        for k in range(4): b("v_mov_b32 v%d, v%d" % (RD + 4 + k, RD + k))
        for k in range(4): b("v_permlane32_swap_b32 v%d, v%d" % (RD + k, RD + 4 + k))
        for k in range(4): b("v_add_f32 v%d, v%d, v%d" % (RD + k, RD + k, RD + 4 + k))
        b("v_cvt_pk_bf16_f32 v%d, v%d, v%d\nv_cvt_pk_bf16_f32 v%d, v%d, v%d" % (RD + 4, RD, RD + 1, RD + 5, RD + 2, RD + 3))
        b("s_mov_b32 exec_hi, 0")
        b("buffer_store_dwordx2 %s, %s, %s, %s offen" % (vr(RD + 4, 2), vOUT, SRD[3], sOUT))
        b("s_mov_b32 exec_hi, -1")

    g.acc_init()
    L = b.lab("wloop")
    b.label(L)
    b("s_add_u32 %s, %s, 1" % (sNEED, sSEG))
    flag_wait(g, vFO, vFlag, sNEED, 0xFFFFFFF, 40)
    b("s_barrier")
    g.acc(0)
    b("s_mul_i32 %s, %s, 12288\ns_add_u32 m0, %s, %d\ns_mov_b32 %s, %s" % (sT1, sW, sT1, OL_W, sT2, sOX))
    for q in range(3):
        for i in range(4): b("buffer_load_dwordx4 %s, %s, %s offen offset:%d sc1 lds" % (vL, WS, sT2, i * 1024))
        if q < 2: b("s_add_u32 m0, m0, 4096\ns_add_u32 %s, %s, 4096" % (sT2, sT2))
    b("s_mul_i32 %s, %s, 3072\ns_add_u32 m0, %s, %d" % (sT1, sW, sT1, HL_W))
    for i in range(3): b("buffer_load_dwordx4 %s, %s, %s offen offset:%d sc1 lds" % (vL, WS, sHX, i * 1024))
    for tt in range(2):
        b("buffer_load_dword v%d, %s, %s, %s offen offset:%d sc1" % (GT + tt, vGX, WS, sGX, tt * 64))
    b("buffer_load_dword %s, %s, %s, 0 offen sc1" % (vFlagP, vFP, WS))
    b("s_waitcnt vmcnt(0)")
    g.acc(1)
    flag_wait(g, vFP, vFlagP, sSEG, 0xFFFFFFFF, 41)
    b("s_barrier")
    g.acc(2)
    NORED = b.lab("nored")
    b("s_cmp_eq_u32 %s, 0\ns_cbranch_scc1 %s" % (sSEG, NORED))
    reduce_loads()
    b.label(NORED)
    seq = [(ks, tt) for ks in range(30) for tt in range(2)]
    FB, NFB, AH = 16, 6, 4
    def rd(i):
        ks, tt = seq[i]
        off = OL_W + (tt * 24 + ks) * 1024 if ks < 24 else HL_W + (tt * 6 + ks - 24) * 1024
        b("ds_read_b128 %s, %s offset:%d" % (vr(FB + 4 * (i % NFB), 4), vL, off))
    for i in range(AH): rd(i)
    for i, (ks, tt) in enumerate(seq):
        if i + AH < len(seq):
            rd(i + AH); b("s_waitcnt lgkmcnt(%d)" % AH)
        else:
            b("s_waitcnt lgkmcnt(%d)" % (len(seq) - 1 - i))
        fr = vr(FB + 4 * (i % NFB), 4)
        for p in range(2):
            if ks < 24:
                a = vr(AA + (tt * 2 + p) * 4, 4); w = ar((p * 24 + ks) * 4, 4); first = ks == 0
            else:
                a = vr(AB + (tt * 2 + p) * 4, 4); w = ar(192 + (p * 6 + ks - 24) * 4, 4); first = ks == 24
            b("v_mfma_f32_16x16x32_bf16 %s, %s, %s, %s" % (a, w, fr, "0" if first else a))
    g.acc(3)
    NORED2 = b.lab("nored")
    b("s_cmp_eq_u32 %s, 0\ns_cbranch_scc1 %s" % (sSEG, NORED2))
    b("s_waitcnt vmcnt(0)")
    reduce_math()
    b.label(NORED2)
    g.acc(4)
    for tt in range(2):
        for p in range(2):
            a = AA + (tt * 2 + p) * 4; c = AB + (tt * 2 + p) * 4
            for k in range(4): b("v_sub_f32 v%d, v%d, v%d" % (a + k, a + k, c + k))
            for k in range(4): b("v_fma_f32 v%d, v%d, v%d, v%d" % (a + k, a + k, GT + tt, c + k))
            b("s_add_u32 %s, %s, %d" % (sT0, sPS, tt * 65536 + p * 256))
            b("buffer_store_dwordx4 %s, %s, %s, %s offen sc1" % (vr(a, 4), vPS, WS, sT0))
    b("buffer_load_dword %s, %s, %s, 0 offen sc1" % (vFlag, vFO, WS))
    b("s_add_u32 %s, %s, 49152\ns_add_u32 %s, %s, 12288\ns_add_u32 %s, %s, 128" % (sOX, sOX, sHX, sHX, sGX, sGX))
    b("s_add_u32 %s, %s, %d\ns_add_u32 %s, %s, %d\ns_add_u32 %s, %s, 40960" % (sPS, sPS, 5 * 131072, sPR, sPR, 5 * 131072, sOUT, sOUT))
    b("s_add_u32 %s, %s, 1\ns_waitcnt vmcnt(0)" % (sSEG, sSEG))
    g.flag_store(vFPs, sSEG, "v75", policy=" sc1")
    g.acc(5)
    b("s_cmp_lt_u32 %s, %d\ns_cbranch_scc1 %s" % (sSEG, g.nseg, L))
    b("buffer_load_dword %s, %s, %s, 0 offen sc1\ns_waitcnt vmcnt(0)" % (vFlagP, vFP, WS))
    flag_wait(g, vFP, vFlagP, sSEG, 0xFFFFFFFF, 42)
    reduce_loads()
    b("s_waitcnt vmcnt(0)")
    reduce_math()
    b("s_waitcnt vmcnt(0)")
    g.stamp(12)
    g.acc_dump()
    b("s_branch EXIT")
```

```python
import sys
sys.path.insert(0, "dev")
from ab import Builder, vr, ar, sr
import g as G

NAME = G.NAME

SLOT_SHIFT = 19
R1_OFF = 0
R2_OFF = 163840
R3_OFF = 245760
R4_OFF = 393216
FLAG_OFF = 2097152
FA_OFF = FLAG_OFF
FO_OFF = FLAG_OFF + 4096
FP_OFF = FLAG_OFF + 5120
KXF_OFF = 4194304
VT_OFF = KXF_OFF + 25165824
OXF_OFF = VT_OFF + 25165824
KM_OFF = OXF_OFF + 25165824
VMT_OFF = KM_OFF + 6291456
HXF_OFF = VMT_OFF + 6291456
GX_OFF = HXF_OFF + 6291456
PART_OFF = GX_OFF + 65536
WS_END = PART_OFF + 41943040
assert WS_END <= 268435456

LDS_BYTES = 163840
SPIN_BOUND = 1 << 16

WS, XS = "s[4:7]", "s[8:11]"
SRD = ["s[12:15]", "s[16:19]", "s[20:23]", "s[24:27]"]
SRDB = [12, 16, 20, 24]
sX, sJ, sW, sSEG = "s28", "s29", "s30", "s31"
P_X, P_MEM0, P_WQ, P_WK, P_WV, P_WO = 32, 34, 36, 38, 40, 42
P_WG, P_WU, P_WD, P_GW, P_OUT, P_DBG, P_WS = 48, 50, 52, 54, 56, 58, 60
DBG = "s[64:67]"
sBOUND = "s68"
sT0, sT1, sT2, sT3 = "s69", "s70", "s71", "s72"
LOG2E = 1.4426950408889634


def f2h(x):
    import struct
    return "0x%08x" % struct.unpack("<I", struct.pack("<f", x))[0]


class Gen:
    def __init__(self, roles="CKVQFW", nseg=64, timing=False):
        self.b = Builder()
        self.roles = roles
        self.nseg = nseg
        self.timing = timing
        self.st = ""
        self.sfx = "F"
        self.stamp_wave = 0
        self.stamp_regs = ("v254", "v255")

    def srd(self, idx, ptr, size):
        b = self.b; d = SRDB[idx]
        b("s_mov_b32 s%d, s%d\ns_mov_b32 s%d, s%d\ns_mov_b32 s%d, %d\ns_mov_b32 s%d, 0x20000" %
          (d, ptr, d + 1, ptr + 1, d + 2, size, d + 3))

    def fail(self, code):
        b = self.b
        b("s_sub_u32 %s, %s, 1" % (sBOUND, sBOUND))
        ok = b.lab("ok")
        b("s_cbranch_scc0 %s" % ok)
        b("s_mov_b32 %s, %d\ns_branch FAIL" % (sT0, code))
        b.label(ok)

    def poll_flags(self, vaddr, sneed, vtmp, code, sleep=1):
        b = self.b
        L, D = b.lab("pf"), b.lab("pfd")
        b.label(L)
        b("buffer_load_dword %s, %s, %s, 0 offen sc1" % (vtmp, vaddr, WS))
        b("s_waitcnt vmcnt(0)")
        b("v_cmp_gt_u32 vcc, %s, %s" % (sneed, vtmp))
        b("s_cbranch_vccz %s" % D)
        self.fail(code)
        b("s_sleep %d\ns_branch %s" % (sleep, L))
        b.label(D)

    def flag_store(self, vaddr, sval, vtmp, policy=None):
        b = self.b
        pol = self.st if policy is None else policy
        b("v_mov_b32 %s, %s" % (vtmp, sval))
        b("s_mov_b64 exec, 1")
        b("buffer_store_dword %s, %s, %s, 0 offen%s" % (vtmp, vaddr, WS, pol))
        b("s_mov_b64 exec, -1")

    def stamp(self, idx, cond_seg=None):
        if not self.timing: return
        b = self.b
        L = b.lab("st")
        b("s_cmp_lg_u32 %s, 0\ns_cbranch_scc1 %s" % (sX, L))
        b("s_cmp_lg_u32 %s, %d\ns_cbranch_scc1 %s" % (sW, self.stamp_wave, L))
        if cond_seg is not None:
            b("s_cmp_lg_u32 %s, %d\ns_cbranch_scc1 %s" % (sSEG, cond_seg, L))
        b("s_memtime s[98:99]\ns_lshl_b32 s97, %s, 6\ns_add_u32 s97, s97, %d" % (sJ, 256 + idx * 4))
        r0, r1 = self.stamp_regs
        b("s_waitcnt lgkmcnt(0)\nv_mov_b32 %s, s98\nv_mov_b32 %s, s97\ns_mov_b64 exec, 1" % (r0, r1))
        b("buffer_store_dword %s, %s, %s, 0 offen\ns_mov_b64 exec, -1" % (r0, r1, DBG))
        b.label(L)

    ACC = [87, 88, 89, 90, 91, 92, 93, 94, 95, 96, 100, 101]

    def acc_init(self):
        if not self.timing: return
        b = self.b
        for r in self.ACC: b("s_mov_b32 s%d, 0" % r)
        b("s_memtime s[98:99]\ns_waitcnt lgkmcnt(0)\ns_mov_b32 s97, s98")

    def acc(self, idx):
        if not self.timing: return
        b = self.b; r = self.ACC[idx]
        b("s_memtime s[98:99]\ns_waitcnt lgkmcnt(0)\ns_sub_u32 s97, s98, s97\ns_add_u32 s%d, s%d, s97\ns_mov_b32 s97, s98" % (r, r))

    def acc_dump(self):
        if not self.timing: return
        b = self.b
        L = b.lab("ad")
        r0, r1 = self.stamp_regs
        b("s_cmp_lg_u32 %s, 0\ns_cbranch_scc1 %s" % (sX, L))
        b("s_cmp_lg_u32 %s, %d\ns_cbranch_scc1 %s" % (sW, self.stamp_wave, L))
        b("s_lshl_b32 s97, %s, 6\ns_add_u32 s97, s97, %d\nv_mov_b32 %s, s97\ns_mov_b64 exec, 1" % (sJ, 2304, r1))
        for i, r in enumerate(self.ACC):
            b("v_mov_b32 %s, s%d" % (r0, r))
            b("buffer_store_dword %s, %s, %s, 0 offen offset:%d\ns_waitcnt vmcnt(0)" % (r0, r1, DBG, i * 4))
        b("s_mov_b64 exec, -1")
        b.label(L)

    def lane_ng(self, vn, vg):
        self.b("v_and_b32 %s, 15, v0\nv_lshrrev_b32 %s, 4, v0" % (vn, vg))

    def prologue(self):
        b = self.b
        b("""
        s_cmp_ge_u32 s2, 256
        s_cbranch_scc1 EXIT
        s_load_dwordx16 s[32:47], s[0:1], 0
        s_load_dwordx8 s[48:55], s[0:1], 64
        s_load_dwordx4 s[56:59], s[0:1], 96
        s_load_dwordx2 s[60:61], s[0:1], 112
        s_getreg_b32 s28, hwreg(HW_REG_XCC_ID, 0, 4)
        v_lshrrev_b32 v1, 6, v0
        v_lshlrev_b32 v8, 4, v0
        v_and_b32 v0, 63, v0
        v_readfirstlane_b32 s30, v1
        s_mov_b32 s68, %d
        s_waitcnt lgkmcnt(0)
        s_mov_b32 s4, s60
        s_mov_b32 s5, s61
        s_mov_b32 s6, 0x10000000
        s_mov_b32 s7, 0x20000
        s_mov_b32 s8, s32
        s_mov_b32 s9, s33
        s_mov_b32 s10, 2621440
        s_mov_b32 s11, 0x20000
        s_mov_b32 s64, s58
        s_mov_b32 s65, s59
        s_mov_b32 s66, %d
        s_mov_b32 s67, 0x20000
        s_cmp_lg_u32 s30, 0
        s_cbranch_scc1 PRO_NORANK
        s_lshl_b32 s69, s28, 2
        v_mov_b32 v2, 1
        v_mov_b32 v3, s69
        s_mov_b64 exec, 1
        buffer_atomic_add v2, v3, s[64:67], 0 offen sc0 sc1
        s_mov_b64 exec, -1
        s_lshl_b32 s69, s2, 8
        s_add_u32 s69, s69, %d
        v_mov_b32 v4, 0
        v_lshlrev_b32 v5, 2, v0
        buffer_store_dword v4, v5, s[4:7], s69 offen sc1
        PRO_NORANK:
        v_mov_b32 v4, -1
        v_mov_b32 v5, -1
        v_mov_b32 v6, -1
        v_mov_b32 v7, -1
        s_lshl_b32 s69, s2, 13
        s_add_u32 s70, s69, 4096
        buffer_store_dwordx4 v[4:7], v8, s[4:7], s69 offen sc1
        buffer_store_dwordx4 v[4:7], v8, s[4:7], s70 offen sc1
        s_waitcnt vmcnt(0)
        s_cmp_lg_u32 s30, 0
        s_cbranch_scc1 PRO_NOBC
        v_mov_b32 v3, 0
        s_mov_b64 exec, 1
        ds_write_b32 v3, v2
        s_mov_b64 exec, -1
        s_waitcnt lgkmcnt(0)
        PRO_NOBC:
        s_barrier
        s_cmp_lg_u32 s30, 0
        s_cbranch_scc1 PRO_NOARR
        v_mov_b32 v4, 1
        v_mov_b32 v3, 128
        s_mov_b64 exec, 1
        buffer_atomic_add v4, v3, s[64:67], 0 offen sc1
        s_mov_b64 exec, -1
        PRO_NOARR:
        v_mov_b32 v3, 0
        ds_read_b32 v2, v3
        s_waitcnt lgkmcnt(0)
        v_readfirstlane_b32 s29, v2
        s_barrier
        s_cmp_ge_u32 s28, 8
        s_cbranch_scc1 SAFEWAIT
        s_cmp_ge_u32 s29, 32
        s_cbranch_scc1 SAFEWAIT
        """ % (SPIN_BOUND, 8192 if self.timing else 256, FLAG_OFF))

    def wait_all(self, check):
        b = self.b
        L, D = b.lab("wa"), b.lab("wad")
        b("v_mov_b32 v2, 128")
        b.label(L)
        b("buffer_load_dword v3, v2, %s, 0 offen sc1\ns_waitcnt vmcnt(0)" % DBG)
        b("v_cmp_ne_u32 vcc, 0x100, v3\ns_cbranch_vccz %s" % D)
        self.fail(1)
        b("s_sleep 4\ns_branch %s" % L)
        b.label(D)
        if check:
            b("v_and_b32 v2, 7, v0\nv_lshlrev_b32 v2, 2, v2")
            b("buffer_load_dword v3, v2, %s, 0 offen sc1\ns_waitcnt vmcnt(0)" % DBG)
            b("v_cmp_ne_u32 vcc, 32, v3\ns_cbranch_vccnz SAFEENTRY")

    def dispatch(self):
        b = self.b; s = self.sfx
        for lim, r in ((12, "C"), (16, "K"), (20, "V"), (24, "Q"), (27, "F")):
            b("s_cmp_lt_u32 %s, %d\ns_cbranch_scc1 ROLE_%s%s" % (sJ, lim, r, s))
        b("s_branch ROLE_W%s" % s)

    def panel_setup(self, pitch, perm, vdma):
        b = self.b
        b("v_lshrrev_b32 v2, 3, v0\nv_and_b32 v3, 7, v0\nv_lshrrev_b32 v4, 4, v0")
        if perm:
            b("v_lshlrev_b32 v4, 1, v4")
        else:
            b("v_and_b32 v4, 1, v4\nv_lshlrev_b32 v4, 1, v4")
            b("s_and_b32 %s, %s, 1\ns_lshl_b32 %s, %s, 2" % (sT0, sW, sT0, sT0))
            b("v_or_b32 v4, %s, v4" % sT0)
        b("v_xor_b32 v3, v3, v4\nv_lshlrev_b32 v3, 4, v3")
        b("s_mov_b32 %s, %d\nv_mad_u32_u24 %s, v2, %s, v3" % (sT0, pitch, vdma, sT0))

    def tr_setup(self, perm, vtr):
        b = self.b
        b("v_lshrrev_b32 v2, 4, v0\nv_bfe_u32 v3, v0, 2, 2\nv_and_b32 v4, 3, v0")
        b("v_lshrrev_b32 v5, 1, v3")
        b("v_and_b32 v6, 1, v2\nv_lshl_or_b32 v5, v6, 1, v5\nv_lshlrev_b32 v5, 1, v5")
        if perm:
            b("v_lshl_add_u32 v6, v2, 2, v3")
        else:
            b("v_lshl_add_u32 v6, v2, 3, v3")
        b("s_lshl_b32 %s, %s, 1" % (sT0, sW))
        b("v_lshrrev_b32 v7, 1, v4\nv_or_b32 v7, %s, v7\nv_xor_b32 v7, v7, v5" % sT0)
        b("v_lshlrev_b32 v7, 4, v7\nv_and_b32 v4, 1, v4\nv_lshl_or_b32 v7, v4, 3, v7")
        b("v_lshl_add_u32 %s, v6, 7, v7" % vtr)

    def panel_issue(self, srd, sbase, pitch, nrows, buf, vdma):
        b = self.b
        n = nrows // 32
        b("s_mul_i32 %s, %s, %d\ns_add_u32 %s, %s, %s" % (sT0, sW, 8 * pitch, sT0, sT0, sbase))
        b("s_lshl_b32 %s, %s, 10\ns_add_u32 m0, %s, %d" % (sT1, sW, sT1, buf))
        for i in range(n):
            b("buffer_load_dwordx4 %s, %s, %s offen lds" % (vdma, srd, sT0))
            if i + 1 < n:
                b("s_add_u32 m0, m0, 4096\ns_add_u32 %s, %s, %d" % (sT0, sT0, 32 * pitch))
        return n

    def panel_read(self, nrows, buf, perm, vtr, dst, vtmp):
        b = self.b
        nks = nrows // 32
        hi = 2048 if perm else 512
        cnt = 0
        for ks in range(nks):
            if ks % 10 == 0:
                b("v_add_u32 %s, %d, %s" % (vtmp, buf + ks * 4096, vtr))
            k, r = dst(ks)
            f = ar if k == "a" else vr
            off = (ks % 10) * 4096
            b("ds_read_b64_tr_b16 %s, %s offset:%d" % (f(r, 2), vtmp, off))
            b("ds_read_b64_tr_b16 %s, %s offset:%d" % (f(r + 2, 2), vtmp, off + hi))
            cnt += 2
            if ks % 10 == 9 or ks == nks - 1 or cnt >= 12:
                b("s_waitcnt lgkmcnt(0)"); cnt = 0

    def load_panels(self, panels, vdma_nat, vdma_map, vtr_map):
        b = self.b
        bufs = [0, 81920]
        cnts = []

        def issue(i):
            p = panels[i]
            p["base"](sT2)
            cnts.append(self.panel_issue(p["srd"], sT2, p["pitch"], p["nrows"], bufs[i & 1], vdma_map[(p["pitch"], p["perm"])]))
        issue(0)
        if len(panels) > 1: issue(1)
        for i, p in enumerate(panels):
            later = cnts[i + 1] if i + 1 < len(cnts) else 0
            b("s_waitcnt vmcnt(%d)\ns_barrier" % later)
            self.stamp(10 + 2 * i if i < 3 else 15)
            self.panel_read(p["nrows"], bufs[i & 1], p["perm"], vtr_map[p["perm"]], p["dst"], "v9")
            self.stamp(11 + 2 * i if i < 2 else 15)
            b("s_barrier")
            if i + 2 < len(panels): issue(i + 2)

    def xdma_setup(self, vx):
        b = self.b
        self.lane_ng("v2", "v3")
        b("s_and_b32 %s, %s, 1\ns_lshl_b32 %s, %s, 4" % (sT0, sW, sT0, sT0))
        b("v_add_u32 v2, %s, v2" % sT0)
        b("s_mov_b32 %s, 1280\nv_mul_u32_u24 v2, %s, v2" % (sT0, sT0))
        b("s_lshr_b32 %s, %s, 1\ns_mul_i32 %s, %s, 640" % (sT0, sW, sT0, sT0))
        b("v_lshl_add_u32 v2, v3, 4, v2\nv_add_u32 %s, %s, v2" % (vx, sT0))

    def xdma_issue(self, vx, sseg, sbuf):
        b = self.b
        b("s_mul_i32 %s, %s, 40960" % (sT0, sseg))
        b("s_and_b32 %s, %s, 1\ns_mul_i32 %s, %s, 20" % (sT1, sW, sT1, sT1))
        b("s_lshr_b32 %s, %s, 1\ns_mul_i32 %s, %s, 10" % (sT2, sW, sT2, sT2))
        b("s_add_u32 %s, %s, %s\ns_lshl_b32 %s, %s, 10" % (sT1, sT1, sT2, sT1, sT1))
        b("s_add_u32 m0, %s, %s" % (sT1, sbuf))
        for i in range(10):
            b("buffer_load_dwordx4 %s, %s, %s offen offset:%d lds" % (vx, XS, sT0, i * 64))
            if i < 9: b("s_add_u32 m0, m0, 960")

    def xdma_side(self, vx, sseg, sbuf):
        b = self.b
        b("s_mul_i32 s78, %s, 40960" % sseg)
        b("s_and_b32 %s, %s, 1\ns_mul_i32 %s, %s, 20" % (sT1, sW, sT1, sT1))
        b("s_lshr_b32 %s, %s, 1\ns_mul_i32 %s, %s, 10" % (sT2, sW, sT2, sT2))
        b("s_add_u32 %s, %s, %s\ns_lshl_b32 %s, %s, 10" % (sT1, sT1, sT2, sT1, sT1))
        b("s_add_u32 m0, %s, %s" % (sT1, sbuf))
        return ["buffer_load_dwordx4 %s, %s, s78 offen offset:%d lds\ns_add_u32 m0, m0, 960" % (vx, XS, i * 64) for i in range(10)]

    def xloop(self, vxa, ntile, wreg, acc, swapped=False, fb=16, nfb=6, ahead=4, side=(), every=3):
        b = self.b
        side = list(side)
        seq = [(tt, ks) for tt in range(2) for ks in range(20)]
        def rd(i):
            tt, ks = seq[i]
            b("ds_read_b128 %s, %s offset:%d" % (vr(fb + 4 * (i % nfb), 4), vxa, (tt * 20 + ks) * 1024))
        for i in range(ahead): rd(i)
        for i, (tt, ks) in enumerate(seq):
            if i + ahead < len(seq):
                rd(i + ahead); b("s_waitcnt lgkmcnt(%d)" % ahead)
            else:
                b("s_waitcnt lgkmcnt(%d)" % (len(seq) - 1 - i))
            fr = vr(fb + 4 * (i % nfb), 4)
            for p in range(ntile):
                a = vr(acc(p, tt), 4)
                c = "0" if ks == 0 else a
                if swapped:
                    b("v_mfma_f32_16x16x32_bf16 %s, %s, %s, %s" % (a, fr, wreg(p, ks), c))
                else:
                    b("v_mfma_f32_16x16x32_bf16 %s, %s, %s, %s" % (a, wreg(p, ks), fr, c))
            if side and i % every == 0:
                b(side.pop(0))
        for x in side: b(x)

    def token_prologue(self, panels, check):
        b = self.b
        keys = sorted(set((p["pitch"], p["perm"]) for p in panels))
        vmap = {}
        for i, k in enumerate(keys):
            vmap[k] = "v%d" % (12 + i)
            self.panel_setup(k[0], k[1], vmap[k])
        trm = {}
        for i, perm in enumerate(sorted(set(p["perm"] for p in panels))):
            trm[perm] = "v%d" % (14 + i)
            self.tr_setup(perm, trm[perm])
        self.load_panels(panels, None, vmap, trm)
        self.wait_all(check)

    def role_kv(self, which):
        b = self.b; s = self.sfx
        b.label("ROLE_%s%s" % (which, s))
        if which not in self.roles:
            self.wait_all(s == "F"); b("s_branch EXIT"); return
        isK = which == "K"
        self.srd(0, P_WK if isK else P_WV, 7864320)
        b("s_sub_u32 s73, %s, %d" % (sJ, 12 if isK else 16))
        b("s_lshl_b32 s74, %s, 2\ns_add_u32 s74, s74, s73" % sX)
        def base(p):
            return lambda d: b("s_mul_i32 %s, s74, 384\ns_add_u32 %s, %s, %d" % (d, d, d, p * 128))
        panels = [dict(srd=SRD[0], base=base(p), pitch=12288, nrows=640, perm=False,
                       dst=(lambda ks, p=p: ("a", (p * 20 + ks) * 4))) for p in range(3)]
        self.stamp(0)
        self.token_prologue(panels, s == "F")
        self.stamp(1)
        self.xdma_setup("v10")
        b("v_lshlrev_b32 v11, 4, v0")
        if isK:
            b("s_lshr_b32 %s, %s, 1\ns_lshl_b32 %s, %s, 10" % (sT0, sW, sT0, sT0))
            b("s_and_b32 %s, %s, 1\ns_lshl_b32 %s, %s, 3\ns_add_u32 %s, %s, %s" % (sT1, sW, sT1, sT1, sT0, sT0, sT1))
        else:
            b("s_lshl_b32 %s, %s, 10" % (sT0, sW))
        b("v_add_u32 v12, %s, v11" % sT0)
        b("s_lshl_b32 %s, s74, 7\ns_lshl_b32 %s, %s, 2\ns_add_u32 %s, %s, %s" % (sT0, sT1, sW, sT0, sT0, sT1))
        b("s_add_u32 %s, %s, %d\nv_mov_b32 v13, %s" % (sT0, sT0, FA_OFF + (0 if isK else 16), sT0))
        b("s_mul_i32 s75, s74, %d\ns_add_u32 s75, s75, %d" % (64 * 12288, KXF_OFF if isK else VT_OFF))
        b("s_mov_b32 %s, 0\ns_mov_b32 s76, 0" % sSEG)
        self.xdma_issue("v10", sSEG, "s76")
        b("s_waitcnt vmcnt(0)")
        L = b.lab("kvloop")
        b.label(L)
        b("s_barrier")
        self.stamp(2, 10); self.stamp(8, 11); self.stamp(9, 42)
        b("v_add_u32 v14, s76, v11")
        b("s_xor_b32 s76, s76, 40960\ns_add_u32 s77, %s, 1" % sSEG)
        side = self.xdma_side("v10", "s77", "s76")
        acc = lambda p, tt: 40 + (p * 2 + tt) * 4
        self.stamp(3, 10)
        self.xloop("v14", 3, lambda p, ks: ar((p * 20 + ks) * 4, 4), acc, swapped=not isK, side=side)
        self.stamp(4, 10)
        if isK:
            for p in range(3):
                for tt in range(2):
                    a = acc(p, tt); d = 64 + (p * 2 + tt) * 2
                    b("v_cvt_pk_bf16_f32 v%d, v%d, v%d\nv_cvt_pk_bf16_f32 v%d, v%d, v%d" % (d, a, a + 1, d + 1, a + 2, a + 3))
                    b("s_add_u32 %s, s75, %d" % (sT0, tt * 6144 + p * 2048))
                    b("buffer_store_dwordx2 %s, v12, %s, %s offen%s" % (vr(d, 2), WS, sT0, self.st))
        else:
            for p in range(3):
                d = 64 + p * 4
                for tt in range(2):
                    a = acc(p, tt)
                    b("v_cvt_pk_bf16_f32 v%d, v%d, v%d\nv_cvt_pk_bf16_f32 v%d, v%d, v%d" % (d + 2 * tt, a, a + 1, d + 2 * tt + 1, a + 2, a + 3))
                b("s_add_u32 %s, s75, %d" % (sT0, p * 4096))
                b("buffer_store_dwordx4 %s, v12, %s, %s offen%s" % (vr(d, 4), WS, sT0, self.st))
        self.stamp(5, 10)
        if self.timing:
            b("s_waitcnt vmcnt(%d)" % (7 if isK else 4))
            self.stamp(7, 10)
        b("s_add_u32 s75, s75, 12288\ns_mov_b32 %s, s77" % sSEG)
        b("s_waitcnt vmcnt(0)")
        self.stamp(6, 11)
        self.flag_store("v13", sSEG, "v15")
        b("s_cmp_lt_u32 %s, %d\ns_cbranch_scc1 %s" % (sSEG, self.nseg, L))
        b("s_branch EXIT")

    def role_stub(self, r):
        b = self.b
        b.label("ROLE_%s%s" % (r, self.sfx))
        self.wait_all(self.sfx == "F"); b("s_branch EXIT")

    def body(self):
        self.dispatch()
        from roles2 import role_chain, role_q, role_f, role_w
        role_chain(self)
        self.role_kv("K"); self.role_kv("V")
        role_q(self); role_f(self); role_w(self)

    def build(self):
        b = self.b
        self.prologue()
        self.sfx, self.st = "F", ""
        self.body()
        b.label("SAFEWAIT")
        self.wait_all(False)
        b.label("SAFEENTRY")
        b("s_and_b32 %s, s2, 7\ns_lshr_b32 %s, s2, 3" % (sX, sJ))
        b("s_barrier")
        self.sfx, self.st = "S", " sc1"
        self.body()
        b.label("FAIL")
        b("v_mov_b32 v1, %s\nv_mov_b32 v2, 252\ns_mov_b64 exec, 1" % sT0)
        b("buffer_store_dword v1, v2, %s, 0 offen sc1\ns_waitcnt vmcnt(0)" % DBG)
        b.label("EXIT")
        b("s_endpgm")
        k = NAME + "_kernel"
        return (G.header(["; @launch grid=(256,1,1) block=(256,1,1) lds=%d" % LDS_BYTES]) + G.kernel_open(k) + b.finalize()
                + G.RODATA + G.descriptor(k, 256, 102, 256, 256))


if __name__ == "__main__":
    import argparse
    ap = argparse.ArgumentParser()
    ap.add_argument("out"); ap.add_argument("--roles", default="CKVQFW"); ap.add_argument("--nseg", type=int, default=64)
    ap.add_argument("--timing", action="store_true"); ap.add_argument("--wave", type=int, default=0)
    a = ap.parse_args()
    gg = Gen(a.roles, a.nseg, a.timing); gg.stamp_wave = a.wave
    open(a.out, "w").write(gg.build())
```
